```python
import torch

def _softmax(x, axis=-1):
    return torch.softmax(x, dim=axis)
def _gelu(x):
    return torch.nn.functional.gelu(x, approximate="tanh")
def _silu(x):
    return torch.nn.functional.silu(x)
def _sigmoid(x):
    return torch.sigmoid(x)
def _layernorm(x, axis=-1, eps=1e-5):
    m = x.mean(dim=axis, keepdim=True)
    v = x.var(dim=axis, keepdim=True, unbiased=False)
    return (x - m) / torch.sqrt(v + eps)
def _scatter_add(tgt, idx, src, axis=0):
    return tgt.clone().index_add_(axis, idx, src)
def _segment_sum(src, seg, n):
    out = torch.zeros((n,) + src.shape[1:], dtype=src.dtype)
    return out.index_add_(0, seg, src)
def _pad(x, pw):
    flat = tuple(v for pair in reversed(pw) for v in pair)
    return torch.nn.functional.pad(x, flat)

kernel_name = 'concat_heads__grouped_kv_mqa__sliding_block__prompt'

def setup_inputs():

    _w = (lambda a: (lambda t: t.to(torch.bfloat16) if t.is_floating_point() else t)(torch.as_tensor(a)))
    def _A_setup():
        B, S, D, H = 1, 2048, 512, 32
        Dh = D // H
        return {
            "x": _w((lambda *s: torch.randn(*s, dtype=torch.bfloat16) * 0.05)(B, S, D)),
            "wq": _w((lambda *s: torch.randn(*s, dtype=torch.bfloat16) * 3.2)(D, H * Dh)),
            "wk": _w((lambda *s: torch.randn(*s, dtype=torch.bfloat16) * 3.2)(D, Dh)),
            "wv": _w((lambda *s: torch.randn(*s, dtype=torch.bfloat16) * 1.6)(D, Dh)),
            "wo": _w((lambda *s: torch.randn(*s, dtype=torch.bfloat16) * 1.6)(H * Dh, D)),
        }
    _A_in = _A_setup()

    def _B_setup():
        B, S, D = 1, 2048, 512
        return {
            "x": _w((lambda *s: torch.randn(*s, dtype=torch.bfloat16) * 0.1)(B, S, D)),
            "wqkv": _w((lambda *s: torch.randn(*s, dtype=torch.bfloat16) * 0.8)(D, 3 * D)),
            "wo": _w((lambda *s: torch.randn(*s, dtype=torch.bfloat16) * 0.8)(D, D)),
        }
    _B_in = _B_setup()

    return {
        "A_x": _A_in["x"],
        "A_wq": _A_in["wq"],
        "A_wk": _A_in["wk"],
        "A_wv": _A_in["wv"],
        "A_wo": _A_in["wo"],
        "B_x": _B_in["x"],
        "B_wqkv": _B_in["wqkv"],
        "B_wo": _B_in["wo"],
    }

def reference(A_x, A_wq, A_wk, A_wv, A_wo, B_x, B_wqkv, B_wo):
    def _A_ref(x, wq, wk, wv, wo):
        B, S, D = x.shape
        H = 32
        Dh = D // H
        q = (lambda x, *d: x.permute(*d))((x @ wq).reshape(B, S, H, Dh), 0, 2, 1, 3)
        k = x @ wk
        v = x @ wv
        scores = torch.einsum("bhqd,bkd->bhqk", q, k) * (Dh ** -0.5)
        p = _softmax(scores, axis=-1)
        o = torch.einsum("bhqk,bkd->bhqd", p, v)
        return (lambda x, *d: x.permute(*d))(o, 0, 2, 1, 3).reshape(B, S, H * Dh) @ wo

    def _B_ref(x, wqkv, wo):
        B, S, D = x.shape
        H = 32; Dh = D // H; W = 256
        qkv = (lambda x, *d: x.permute(*d))((x @ wqkv).reshape(B, S, 3, H, Dh), 2, 0, 3, 1, 4)
        q, k, v = qkv[0], qkv[1], qkv[2]
        scores = torch.einsum("bhqd,bhkd->bhqk", q, k) * (Dh ** -0.5)
        idx = torch.arange(S)
        mask = (idx[:, None] - idx[None, :] >= 0) & (idx[:, None] - idx[None, :] < W)
        scores = torch.where(mask[None, None], scores, -1e9)
        p = _softmax(scores, axis=-1)
        o = torch.einsum("bhqk,bhkd->bhqd", p, v)
        return (lambda x, *d: x.permute(*d))(o, 0, 2, 1, 3).reshape(B, S, D) @ wo

    a = _A_ref(A_x, A_wq, A_wk, A_wv, A_wo)
    b = _B_ref(B_x, B_wqkv, B_wo)
    return torch.concatenate([a, b], axis=-1)
```

```python
import sys
NAME='concat_heads__grouped_kv_mqa__sliding_block__prompt'
L=[]
def e(s):
    for x in s.strip('\n').split('\n'): L.append('  '+x.strip() if not x.strip().endswith(':') else x.strip())
def vr(a,n): return f'v[{a}:{a+n-1}]'
def nop(n): e(f's_nop {n-1}')
PROF=False
POLLCH=15
SIGCH=9
CNT=0; KA=0x10000; VA=0x20000; KB=0x100000; VB=0x300000; OA=0x600000; OB=0x800000; PRF=0xA00000; WSSZ=0xB00000
XA,WQ,WKV,XB,WB,WOA,WOB,OUT,DBG,WS,MIX=[f's[{a}:{a+3}]' for a in (28,32,36,40,44,48,52,56,60,64,96)]
SW='s3'; RBA='s70'; HG='s71'; RBB='s72'; HP='s73'; T='s74'; T2='s75'; W1K='s76'; SD=['s77','s78','s79','s80']; MIXS='s81'; CB='s82'; RBO='s83'; FLG='s84'; IT='s85'; NT='s86'; SPIN='s87'
nst=[0]
def stamp():
    if PROF:
        e(f's_memrealtime s[100:101]\ns_waitcnt lgkmcnt(0)\nv_writelane_b32 v255, s100, {nst[0]}'); nst[0]+=1
def srd(base,lo,size):
    e(f's_mov_b32 s{base}, s{lo}\ns_mov_b32 s{base+1}, s{lo+1}\ns_mov_b32 s{base+2}, {size}\ns_mov_b32 s{base+3}, 0x20000')
lab=[0]
def poll(voff,target,vt,pre_issued=False):
    lab[0]+=1; n=lab[0]
    e(f's_mov_b32 {SPIN}, 0x40000')
    if pre_issued: e(f's_branch L_pw{n}')
    e(f'L_pl{n}:\nbuffer_load_dword v{vt}, v{voff[0]}, {voff[1]}, 0 offen sc1\nL_pw{n}:\ns_waitcnt vmcnt(0)\nv_cmp_ne_u32 vcc, {target}, v{vt}\ns_sub_u32 {SPIN}, {SPIN}, 1\ns_cbranch_scc1 L_pd{n}\ns_cbranch_vccnz L_pl{n}\nL_pd{n}:')
def prologue():
    e(f'''s_cmp_ge_u32 s2, 256
    s_cbranch_scc1 L_end
    s_load_dwordx16 s[4:19], s[0:1], 0
    s_load_dwordx4 s[20:23], s[0:1], 64
    s_load_dwordx2 s[24:25], s[0:1], 80
    v_lshrrev_b32 v1, 6, v0
    v_and_b32 v0, 63, v0
    s_lshr_b32 s68, s2, 3
    v_readfirstlane_b32 {SW}, v1
    s_and_b32 s69, s2, 7
    s_lshr_b32 {T}, s68, 3
    s_lshl_b32 {RBA}, s69, 2
    s_add_u32 {RBA}, {RBA}, {T}
    s_and_b32 {HG}, s68, 7
    s_lshr_b32 {RBB}, s69, 1
    s_lshl_b32 {RBB}, {RBB}, 2
    s_add_u32 {RBB}, {RBB}, {T}
    s_and_b32 {T2}, s69, 1
    s_lshl_b32 {HP}, {T2}, 3
    s_add_u32 {HP}, {HP}, {HG}
    s_lshl_b32 {RBO}, {RBB}, 1
    s_add_u32 {RBO}, {RBO}, {T2}
    s_lshl_b32 {W1K}, {SW}, 10
    v_lshrrev_b32 v21, 3, v0
    v_and_b32 v22, 7, v0
    v_lshrrev_b32 v23, 4, v0''')
    e(f'''s_lshl_b32 {T}, {SW}, 2
    v_add_u32 v1, {T}, v23
    v_and_b32 v1, 7, v1
    v_xor_b32 v1, v1, v22
    v_lshlrev_b32 v1, 4, v1
    v_lshl_add_u32 v2, v21, 10, v1
    s_lshl_b32 {T}, {RBA}, 16
    s_lshl_b32 {T2}, {SW}, 13
    s_add_u32 {T}, {T}, {T2}
    v_add_u32 v2, {T}, v2''')
    e(f'''s_and_b32 {T}, {SW}, 1
    s_lshl_b32 {T}, {T}, 2
    v_and_b32 v1, 1, v23
    v_lshlrev_b32 v1, 1, v1
    v_or_b32 v1, {T}, v1
    v_xor_b32 v1, v1, v22
    v_lshlrev_b32 v1, 4, v1
    v_lshl_add_u32 v3, v21, 10, v1
    s_lshl_b32 {T}, {HG}, 7
    s_add_u32 {T}, {T}, {T2}
    v_add_u32 v3, {T}, v3''')
    e(f'''s_cmp_lt_u32 {SW}, 2
    s_cselect_b32 {T}, {W1K}, 0x40000000
    v_lshl_add_u32 v4, v0, 4, {T}
    s_waitcnt lgkmcnt(0)''')
    srd(28,4,2097152); srd(32,6,524288)
    e(f's_bitcmp1_b32 {HG}, 0\ns_cselect_b32 s36, s10, s8\ns_cselect_b32 s37, s11, s9\ns_mov_b32 s38, 16384\ns_mov_b32 s39, 0x20000')
    stamp()
    for c in range(4): dma(c)
    srd(40,14,2097152); srd(44,16,1572864); srd(48,12,524288); srd(52,18,524288); srd(56,20,4194304); srd(60,22,256); srd(64,24,WSSZ)
    e(f'''s_cmp_lg_u32 s2, 0
    s_cbranch_scc1 L_noinit
    s_cmp_lg_u32 {SW}, 7
    s_cbranch_scc1 L_noinit
    v_lshlrev_b32 v1, 8, v0
    v_mov_b32 v24, 0
    buffer_store_dword v24, v1, {WS}, 0 offen sc1
    v_mov_b32 v25, 1
    s_waitcnt vmcnt(0)
    buffer_store_dword v25, v24, {DBG}, 0 offen sc1
    s_waitcnt vmcnt(0)
    L_noinit:''')
    e(f's_cmp_lt_u32 {SW}, 2')
    for k in range(4): e(f's_cselect_b32 s{96+k}, s{40+k}, s{44+k}')
    e(f's_mov_b32 {T}, 128\ns_cselect_b32 {MIXS}, {T}, 196608')
    for n in range(4):
        e(f's_add_u32 s88, {SW}, {7*n}\ns_lshl_b32 {T}, s88, 10\ns_cmp_lt_u32 {SW}, 7\ns_cselect_b32 {SD[n]}, {T}, {28672+1024*n}')
        if n<3:
            e(f'''s_lshl_b32 {T}, s88, 2
            v_add_u32 v1, {T}, v23
            v_and_b32 v1, 7, v1
            v_xor_b32 v1, v1, v22
            v_lshlrev_b32 v1, 4, v1
            v_lshl_add_u32 v1, v21, 10, v1
            s_lshl_b32 {T}, {RBB}, 17
            s_lshl_b32 {T2}, s88, 13
            s_add_u32 {T}, {T}, {T2}
            v_add_u32 v{5+n}, {T}, v1''')
        if n>=2:
            if n==2: e(f's_cmp_lt_u32 {SW}, 2\ns_cbranch_scc1 L_skw')
            e(f'''s_sub_u32 {T}, s88, 16
            s_lshl_b32 {T}, {T}, 6
            v_add_u32 v1, {T}, v0
            v_mul_u32_u24 v24, 5462, v1
            v_lshrrev_b32 v24, 16, v24
            v_mul_u32_u24 v25, 12, v24
            v_sub_u32 v1, v1, v25
            v_lshrrev_b32 v25, 2, v24
            v_and_b32 v25, 2, v25
            v_xor_b32 v1, v1, v25
            v_mul_u32_u24 v24, 3072, v24
            v_lshrrev_b32 v25, 2, v1
            v_lshl_add_u32 v24, v25, 10, v24
            v_and_b32 v1, 3, v1
            v_lshl_add_u32 v24, v1, 4, v24
            s_lshl_b32 {T}, {HP}, 6
            v_add_u32 v{5+n}, {T}, v24''')
            if n==2: e('L_skw:')
    e(f's_cmp_lt_u32 {SW}, 7\ns_cbranch_scc1 L_n7a')
    for n in range(4): e(f'v_mov_b32 v{5+n}, 0x40000000')
    e('L_n7a:')
    e(f'''v_and_b32 v24, 15, v0
    v_bfe_u32 v25, v0, 1, 3
    v_xor_b32 v25, v25, v23
    v_lshlrev_b32 v25, 4, v25
    v_lshl_add_u32 v25, v24, 7, v25
    s_and_b32 {T}, {SW}, 1
    s_lshl_b32 {T}, {T}, 12
    v_add_u32 v9, {T}, v25
    s_lshr_b32 {T}, {HG}, 1
    s_lshl_b32 {T}, {T}, 11
    v_add_u32 v12, {T}, v25
    s_and_b32 {T}, {SW}, 3
    s_lshl_b32 {T}, {T}, 12
    v_add_u32 v124, {T}, v25
    v_bfe_u32 v26, v0, 2, 2
    v_lshl_add_u32 v27, v23, 3, v26
    v_and_b32 v28, 3, v0
    v_lshlrev_b32 v28, 3, v28
    v_and_b32 v29, 1, v23
    v_lshrrev_b32 v30, 1, v26
    v_lshl_or_b32 v30, v29, 1, v30
    s_lshr_b32 {T}, {SW}, 1
    v_xor_b32 v30, {T}, v30
    v_lshl_add_u32 v30, v30, 5, v28
    v_lshl_add_u32 v11, v27, 7, v30
    v_add_u32 v11, 8192, v11
    v_lshl_add_u32 v14, v27, 5, v28
    v_add_u32 v14, 16384, v14
    s_lshr_b32 {T}, {SW}, 2
    v_xor_b32 v29, {T}, v29
    v_lshl_add_u32 v29, v29, 5, v28
    v_mul_u32_u24 v27, 192, v27
    v_add3_u32 v125, v27, v29, 0
    v_add_u32 v125, 16384, v125
    v_xor_b32 v10, 64, v9
    v_xor_b32 v13, 64, v12''')
    for r in range(80,116,2): e(f'v_mov_b64 {vr(r,2)}, 0')
vm=[]
def issued(tag,n=1): vm.extend([tag]*n)
def waitfor(tag):
    idx=[i for i,t in enumerate(vm) if t==tag]
    if not idx: return
    n=len(vm)-1-max(idx); e(f's_waitcnt vmcnt({n})'); del vm[:max(idx)+1]
def dma(c):
    sb=(c%5)*32768
    if c<8:
        for v,s,so,d in ((2,XA,c*128,0),(3,WQ,c*65536,8192),(4,WKV,c*2048,16384)):
            e(f's_add_u32 m0, {W1K}, {sb+d}\ns_mov_b32 {T}, {so}\nbuffer_load_dwordx4 v{v}, {s}, {T} offen lds')
        issued(('c',c),3)
    else:
        k=c-8
        for n,s in enumerate((XB,XB,MIX,WB)):
            e(f's_add_u32 m0, {SD[n]}, {sb}')
            e(f's_mul_i32 {T}, {MIXS}, {k}' if n==2 else f's_mov_b32 {T}, {k*(128 if n<2 else 196608)}')
            e(f'buffer_load_dwordx4 v{5+n}, {s}, {T} offen lds')
        issued(('c',c),4)
M16='v_mfma_f32_16x16x32_bf16'
cur=[None]
def chunk(c):
    A=c<8; sb=(c%5)*32768; hi,lo=sb&~0xFFFF,sb&0xFFFF
    if c==POLLCH:
        e(f's_cmp_lg_u32 {SW}, 7\ns_cbranch_scc1 L_n7p\nv_lshlrev_b32 v1, 8, v22')
        poll((1,WS),32,24); e('L_n7p:')
    waitfor(('c',c)); e('s_barrier')
    if c==8: e('v_mov_b32 v9, v124\nv_mov_b32 v11, v125\nv_xor_b32 v10, 64, v124'); cur[0]=None
    if cur[0]!=hi:
        for k in range(6 if A else 3): e(f'v_add_u32 v{15+k}, {hi}, v{9+k}')
        cur[0]=hi
    ns=1 if A else 3
    for ks in range(2):
        for t in range(2): e(f'ds_read_b128 {vr(24+8*ks+4*t,4)}, v{15+ks} offset:{lo+2048*t}')
        for s in range(ns):
            for h in range(2):
                off=lo+(4096*ks+512*h if A else 6144*ks+768*h+64*s)
                e(f'ds_read_b64_tr_b16 {vr(40+12*ks+4*s+2*h,2)}, v17 offset:{off}')
    if c+4<16: dma(c+4)
    if c==POLLCH:
        e(f'v_lshlrev_b32 v1, 4, v0\ns_lshl_b32 {T2}, {SW}, 14\nv_add_u32 v1, {T2}, v1')
        for n in range(16):
            if n%4==0: e(f's_mov_b32 {T}, {KA+n*1024}')
            e(f'buffer_load_dwordx4 {vr(128+4*n,4)}, v1, {WS}, {T} offen offset:{(n%4)*1024} sc1')
        issued('kv',16)
    for ks in range(2):
        e(f's_waitcnt lgkmcnt({(2+2*ns) if ks==0 else 0})')
        for s in range(ns):
            for t in range(2):
                x=vr(24+8*ks+4*t,4); w=vr(40+12*ks+4*s,4); a=vr((80 if A else 92+8*s)+4*t,4)
                e(f'{M16} {a}, {x}, {w}, {a}' if s==2 else f'{M16} {a}, {w}, {x}, {a}')
    if A:
        e(f's_cmp_lg_u32 {SW}, 7\ns_cbranch_scc1 L_nk{c}')
        for ks in range(2):
            e(f'ds_read_b128 {vr(64+4*ks,4)}, v{18+ks} offset:{lo}')
            for h in range(2): e(f'ds_read_b64_tr_b16 {vr(72+4*ks+2*h,2)}, v20 offset:{lo+1024*ks+128*h}')
        e(f's_bitcmp1_b32 {HG}, 0\ns_waitcnt lgkmcnt(0)\ns_cbranch_scc1 L_kv{c}')
        for ks in range(2): e(f'{M16} v[88:91], {vr(72+4*ks,4)}, {vr(64+4*ks,4)}, v[88:91]')
        e(f's_branch L_nk{c}\nL_kv{c}:')
        for ks in range(2): e(f'{M16} v[88:91], {vr(64+4*ks,4)}, {vr(72+4*ks,4)}, v[88:91]')
        e(f'L_nk{c}:')
SC=0x3EB8AA3B
def pack(dst,src,scale):
    if scale:
        for i in range(8): e(f'v_mul_f32 v{src+i}, {hex(SC)}, v{src+i}')
    for i in range(4): e(f'v_cvt_pk_bf16_f32 v{dst+i}, v{src+2*i}, v{src+2*i+1}')
    nop(2)
    e(f'v_permlane16_swap_b32 v{dst}, v{dst+2}\nv_permlane16_swap_b32 v{dst+1}, v{dst+3}')
def projections():
    for c in range(16):
        chunk(c)
        if c==7:
            nop(8); pack(116,80,True)
            e(f'''s_cmp_lg_u32 {SW}, 7
            s_cbranch_scc1 L_n7s
            v_cvt_pk_bf16_f32 v88, v88, v89
            v_cvt_pk_bf16_f32 v89, v90, v91
            s_lshl_b32 {T}, {RBA}, 1
            s_lshr_b32 {T2}, {HG}, 2
            s_add_u32 {T}, {T}, {T2}
            s_lshl_b32 {T}, {T}, 10
            s_bfe_u32 {T2}, {HG}, 0x10001
            s_bitcmp1_b32 {HG}, 0
            s_cselect_b32 s88, 9, 8
            s_cselect_b32 s89, 8, 9
            s_cselect_b32 s90, 2, 1
            s_lshl_b32 s90, s90, 16
            s_lshl_b32 {T2}, {T2}, s88
            s_add_u32 {T}, {T}, {T2}
            s_add_u32 {T}, {T}, s90
            v_lshrrev_b32 v1, 5, v0
            v_lshlrev_b32 v1, s89, v1
            v_and_b32 v90, 15, v0
            v_lshl_add_u32 v1, v90, 4, v1
            v_and_b32 v90, 1, v23
            v_lshl_add_u32 v1, v90, 3, v1
            buffer_store_dwordx2 v[88:89], v1, {WS}, {T} offen sc1
            v_mov_b32 v91, 0
            buffer_load_dword v90, v91, {DBG}, 0 offen sc1
            L_n7s:''')
            stamp()
        if c==SIGCH:
            e(f's_cmp_lg_u32 {SW}, 7\ns_cbranch_scc1 L_n7g')
            poll((91,DBG),1,90,pre_issued=True)
            signal(f's_and_b32 {T}, s2, 7'); e('L_n7g:')
def signal(lineexpr):
    e(lineexpr)
    e(f's_lshl_b32 {T}, {T}, 8\nv_mov_b32 v1, 1\nv_mov_b32 v254, 0\ns_mov_b64 exec, 1\nbuffer_atomic_add v1, v254, {WS}, {T} offen sc1\ns_mov_b64 exec, -1')
```

```python
from gen1 import *
import gen1
QK='v_mfma_f32_32x32x16_bf16'; SM='v_smfmac_f32_32x32x32_bf16'
S=[24,40]; C=56; O=72; KF=[88,92]; V0=[96,100]; V1=[104,108]; IDX=112; VK=113; VV=114; QA=116; QB=120
BK=128; BV=164; TP=236
def bepi():
    stamp()
    nop(8); pack(120,92,True); pack(24,100,False); pack(28,108,False)
    e(f'''s_lshl_b32 s91, {RBB}, 2
    s_and_b32 {T}, {SW}, 3
    s_add_u32 s91, s91, {T}
    s_lshl_b32 s92, {HP}, 1
    s_lshr_b32 {T}, {SW}, 2
    s_add_u32 s92, s92, {T}
    s_lshl_b32 s93, s92, 6
    s_add_u32 s93, s93, s91
    s_lshl_b32 {T}, s93, 10
    s_add_u32 {T}, {T}, {KB}
    v_lshlrev_b32 v2, 4, v0
    buffer_store_dwordx4 v[24:27], v2, {WS}, {T} offen sc1
    s_mul_i32 {T}, s93, 1088
    s_add_u32 {T}, {T}, {VB}
    v_and_b32 v3, 1, v23
    v_lshrrev_b32 v4, 5, v0
    v_lshl_add_u32 v3, v3, 1, v4
    v_mul_u32_u24 v3, 272, v3
    v_and_b32 v5, 15, v0
    v_lshl_add_u32 v6, v5, 4, v3
    buffer_store_dwordx4 v[28:31], v6, {WS}, {T} offen sc1
    v_mov_b32 v32, 0x3f803f80
    v_mov_b32 v33, v32
    v_mov_b32 v34, v32
    v_mov_b32 v35, v32
    s_mov_b64 exec, 0x0001000100010001
    buffer_store_dwordx4 v[32:35], v3, {WS}, {T} offen offset:256 sc1
    s_mov_b64 exec, -1'''.replace('s_mov_b64 exec, 0x0001000100010001','s_mov_b32 exec_lo, 0x00010001\ns_mov_b32 exec_hi, 0x00010001'))
    issued('kb',3)
    e(f'''s_lshl_b32 {T}, {SW}, 14
    v_add_u32 v7, {T}, v2
    v_mul_u32_u24 v9, 272, v23
    v_lshl_add_u32 v9, v5, 4, v9
    s_mul_i32 {T}, {SW}, {16*1088}
    s_sub_u32 {T}, {T}, {64*1088-65536}
    v_add_u32 v9, {T}, v9
    v_and_b32 v8, 31, v0
    s_lshl_b32 {T}, {SW}, 5
    v_add_u32 v8, {T}, v8
    v_mul_u32_u24 v8, 272, v8
    v_add_u32 v8, {65536+256}, v8
    s_barrier
    ds_write_b128 v8, v[32:35]''')
    waitfor('kv')
    e(f's_cmp_ge_u32 {SW}, 4\ns_cbranch_scc1 L_stv')
    for n in range(16): e(f'ds_write_b128 v7, {vr(128+4*n,4)} offset:{1024*n}')
    e('s_branch L_std\nL_stv:')
    for n in range(16): e(f'ds_write_b128 v9, {vr(128+4*n,4)} offset:{1088*n}')
    e(f'''L_std:
    v_mov_b32 v{IDX}, 0xdddd
    v_and_b32 v1, 31, v0
    v_min_u32 v1, 16, v1
    v_lshlrev_b32 v1, 4, v1
    v_mul_u32_u24 v3, 272, v4
    v_add_u32 v115, v3, v1''')
    waitfor('kb')
    e(f's_waitcnt lgkmcnt(0)\ns_barrier\ns_cmp_lg_u32 {SW}, 7\ns_cbranch_scc1 L_n7b')
    signal(f's_and_b32 {T}, s2, 7\ns_add_u32 {T}, {T}, 8'); e('L_n7b:')
    stamp()
def rowmax(dst,src,acc=False):
    r=list(range(src,src+16))
    if acc: e(f'v_max3_f32 v{dst}, v{dst}, v{r[0]}, v{r[1]}'); r=r[2:]
    else: e(f'v_max3_f32 v{dst}, v{r[0]}, v{r[1]}, v{r[2]}\nv_max_f32 v{dst}, v{dst}, v{r[3]}'); r=r[4:]
    for i in range(0,len(r),2): e(f'v_max3_f32 v{dst}, v{dst}, v{r[i]}, v{r[i+1]}')
def xhalf(dst,tmp):
    e(f'v_mov_b32 v{tmp}, v{dst}'); nop(2); e(f'v_permlane32_swap_b32 v{dst}, v{tmp}'); nop(1); e(f'v_max_f32 v{dst}, v{dst}, v{tmp}')
def ex(b,i0):
    for i in range(i0,i0+4): e(f'v_exp_f32 v{S[b]+i}, v{S[b]+i}')
def check(tag):
    e(f'''v_max3_f32 v1, |v{O}|, |v{O+1}|, |v{O+2}|
    v_max3_f32 v1, v1, |v{O+3}|, |v{O+4}|
    v_max3_f32 v1, v1, |v{O+5}|, |v{O+6}|
    v_add_f32 v2, v{O}, v{O+1}
    v_max_f32 v1, v1, |v{O+7}|''')
    for i in range(2,8): e(f'v_add_f32 v2, v2, v{O+i}')
    e(f'''v_cmp_nlt_f32 vcc, v{O+8}, v252
    v_cmp_nlt_f32 s[88:89], v1, v253
    s_or_b64 vcc, vcc, s[88:89]
    v_cmp_u_f32 s[88:89], v2, v2
    s_or_b64 vcc, vcc, s[88:89]
    s_cmp_eq_u32 {FLG}, 0
    s_cselect_b64 vcc, vcc, 0
    s_cmp_lg_u64 vcc, 0
    s_cbranch_scc1 L_fb{tag}''')
def onorm(dst):
    e(f'v_rcp_f32 v1, v{O+8}'); nop(1)
    for i in range(8): e(f'v_mul_f32 v{O+i}, v{O+i}, v1')
    for i in range(4): e(f'v_cvt_pk_bf16_f32 v{dst+i}, v{O+2*i}, v{O+2*i+1}')
def attnA():
    e(f'''v_lshlrev_b32 v{VK}, 4, v0
    v_mov_b32 v252, 0x71800000
    v_mov_b32 v253, 0x7e800000
    s_mov_b32 {FLG}, 0
    ds_read_b128 {vr(KF[0],4)}, v{VK}
    s_waitcnt lgkmcnt(0)
    {QK} {vr(S[0],16)}, {vr(KF[0],4)}, {vr(QA,4)}, 0''')
    nop(8);nop(4); rowmax(1,S[0]); xhalf(1,2)
    e(f'v_add_f32 v1, 0x42800000, v1\nL_Arun:')
    for i in range(16): e(f'v_sub_f32 v{C+i}, 0, v1')
    e(f'''v_lshlrev_b32 v{VK}, 4, v0
    v_add_u32 v{VV}, 65536, v115
    ds_read_b128 {vr(KF[0],4)}, v{VK}
    ds_read_b128 {vr(KF[1],4)}, v{VK} offset:1024
    ds_read_b128 {vr(V0[0],4)}, v{VV}
    ds_read_b128 {vr(V1[0],4)}, v{VV} offset:544''')
    for r in list(range(O,O+16,2))+list(range(S[1]+8,S[1]+16,2))+[V1[1],V1[1]+2]: e(f'v_mov_b64 {vr(r,2)}, 0')
    e(f's_waitcnt lgkmcnt(3)\n{QK} {vr(S[0],16)}, {vr(KF[0],4)}, {vr(QA,4)}, {vr(C,16)}\ns_mov_b32 {IT}, 0')
    nop(8);nop(4)
    e('L_Aloop:')
    for t in range(4):
        b=t&1;o=b^1
        ex(b,0)
        e(f'{SM} {vr(O,16)}, {vr(V1[o],4)}, {vr(S[o]+8,8)}, v{IDX}')
        ex(b,4)
        e(f's_waitcnt lgkmcnt(0)\n{QK} {vr(S[o],16)}, {vr(KF[o],4)}, {vr(QA,4)}, {vr(C,16)}')
        e(f'ds_read_b128 {vr(KF[b],4)}, v{VK} offset:{1024*(t+2)}')
        e(f'ds_read_b128 {vr(V0[o],4)}, v{VV} offset:{1088*(t+1)}')
        e(f'ds_read_b128 {vr(V1[o],4)}, v{VV} offset:{1088*(t+1)+544}')
        ex(b,8)
        e(f'{SM} {vr(O,16)}, {vr(V0[b],4)}, {vr(S[b],8)}, v{IDX}')
        if t==3: e(f'v_add_u32 v{VK}, 4096, v{VK}\nv_add_u32 v{VV}, 4352, v{VV}')
        ex(b,12)
    e(f'''s_add_u32 {IT}, {IT}, 1
    s_and_b32 {T}, {IT}, 13
    s_or_b32 {T}, {T}, {FLG}
    s_cmp_eq_u32 {T}, 8
    s_cbranch_scc1 L_side
    L_back:
    s_cmp_lt_u32 {IT}, 16
    s_cbranch_scc1 L_Aloop''')
    nop(1)
    e(f'{SM} {vr(O,16)}, {vr(V1[1],4)}, {vr(S[1]+8,8)}, v{IDX}\ns_waitcnt lgkmcnt(0)')
    nop(8);nop(8);nop(2)
    check('A'); stamp(); onorm(88)
    e(f'''s_lshl_b32 {T}, {RBA}, 1
    s_and_b32 {T2}, {SW}, 1
    s_add_u32 {T}, {T}, {T2}
    s_lshl_b32 {T}, {T}, 3
    s_add_u32 {T}, {T}, {HG}
    s_lshl_b32 {T}, {T}, 2
    s_lshr_b32 {T2}, {SW}, 1
    s_add_u32 {T}, {T}, {T2}
    s_lshl_b32 {T}, {T}, 10
    s_add_u32 {T}, {T}, {OA}
    v_lshlrev_b32 v4, 4, v0
    buffer_store_dwordx4 v[88:91], v4, {WS}, {T} offen sc1''')
def side():
    e(f'''L_side:
    s_cmp_eq_u32 {IT}, 10
    s_cbranch_scc1 L_side2
    v_lshlrev_b32 v2, 8, v22
    v_add_u32 v2, 2048, v2
    buffer_load_dword v3, v2, {WS}, 0 offen sc1
    s_lshl_b32 {T}, {SW}, 16
    s_lshl_b32 {T2}, {HG}, 7
    s_add_u32 {T}, {T}, {T2}
    v_lshlrev_b32 v4, 10, v0
    buffer_load_dword v5, v4, {WOA}, {T} offen
    buffer_load_dword v6, v4, {WOB}, {T} offen
    s_branch L_back
    L_side2:''')
    poll((2,WS),32,3,pre_issued=True)
    e(f'''s_min_u32 {NT}, s91, 8
    v_lshlrev_b32 v4, 4, v0''')
    for k in range(9):
        e(f'''s_min_u32 {T2}, {NT}, {k}
        s_sub_u32 {T2}, s93, {T2}
        s_lshl_b32 {T}, {T2}, 10
        s_add_u32 {T}, {T}, {KB}
        buffer_load_dwordx4 {vr(BK+4*k,4)}, v4, {WS}, {T} offen sc1
        s_mul_i32 {T}, {T2}, 1088
        s_add_u32 {T}, {T}, {VB}
        buffer_load_dwordx4 {vr(BV+8*k,4)}, v115, {WS}, {T} offen sc1
        buffer_load_dwordx4 {vr(BV+8*k+4,4)}, v115, {WS}, {T} offen offset:544 sc1''')
    e('s_branch L_back')
def fbA():
    e(f'''L_fbA:
    s_mov_b32 {FLG}, 16
    v_lshlrev_b32 v{VK}, 4, v0
    v_mov_b32 v1, 0xff800000
    s_mov_b32 {IT}, 0
    L_fbAl:
    ds_read_b128 {vr(KF[0],4)}, v{VK}
    v_add_u32 v{VK}, 1024, v{VK}
    s_waitcnt lgkmcnt(0)
    {QK} {vr(S[0],16)}, {vr(KF[0],4)}, {vr(QA,4)}, 0''')
    nop(8);nop(4); rowmax(1,S[0],True)
    e(f's_add_u32 {IT}, {IT}, 1\ns_cmp_lt_u32 {IT}, 64\ns_cbranch_scc1 L_fbAl')
    xhalf(1,2); e('s_branch L_Arun')
def attnB():
    e(f'''v_and_b32 v1, 31, v0
    v_lshrrev_b32 v2, 5, v0
    v_lshlrev_b32 v2, 2, v2
    v_sub_u32 v1, v1, v2
    v_cvt_f32_i32 v1, v1
    v_mov_b32 v2, 0x5d800000
    s_mov_b32 {FLG}, 0''')
    import struct
    for r in range(16):
        jr=8*(r>>2)+(r&3); k=struct.unpack('<I',struct.pack('<f',(0.5-jr)*2.0**60))[0]
        e(f'v_fmaak_f32 v{TP+r}, v1, v2, {hex(k)}')
    for r in range(16): e(f'v_min_f32 v{S[0]+r}, 0, v{TP+r}')
    e(f's_waitcnt vmcnt(1)\n{QK} {vr(S[0],16)}, {vr(BK,4)}, {vr(QB,4)}, {vr(S[0],16)}')
    e(f'''v_and_b32 v1, 1, v23
    v_lshlrev_b32 v1, 2, v1
    v_xor_b32 v1, v1, v22
    v_lshlrev_b32 v1, 4, v1
    v_lshl_add_u32 v5, v21, 10, v1
    s_lshl_b32 {T}, {SW}, 16
    s_lshl_b32 {T2}, {HG}, 7
    s_add_u32 {T}, {T}, {T2}
    v_add_u32 v5, {T}, v5
    s_lshl_b32 s94, {SW}, 13''')
    nop(4); rowmax(1,S[0]); xhalf(1,2)
    e(f'v_add_f32 v6, 0x42800000, v1\ns_waitcnt vmcnt(0)\ns_barrier\ns_cmp_lg_u32 {SW}, 7\ns_cbranch_scc1 L_n7c')
    signal(f's_add_u32 {T}, {RBA}, 16'); e('L_n7c:')
    for br,(srd_,R) in enumerate(((WOA,0),(WOB,69632))):
        for n in range(8):
            e(f's_add_u32 m0, s94, {R+n*1024}\ns_mov_b32 {T}, {n*8192}\nbuffer_load_dwordx4 v5, {srd_}, {T} offen lds')
    stamp()
    e('L_Brun:')
    for r in range(16): e(f'v_min_f32 v{S[0]+r}, v{TP+r}, -v6')
    for r in range(O,O+16,2): e(f'v_mov_b64 {vr(r,2)}, 0')
    e(f'{QK} {vr(S[0],16)}, {vr(BK,4)}, {vr(QB,4)}, {vr(S[0],16)}')
    for i in range(16): e(f'v_sub_f32 v{C+i}, 0, v6')
    for k in range(9):
        b=k&1;o=b^1
        ex(b,0)
        if k>0: e(f'{SM} {vr(O,16)}, {vr(BV+8*(k-1)+4,4)}, {vr(S[o]+8,8)}, v{IDX}')
        ex(b,4)
        if k==6: pass
        if k<8: e(f'{QK} {vr(S[o],16)}, {vr(BK+4*(k+1),4)}, {vr(QB,4)}, {vr(C,16)}')
        ex(b,8)
        e(f'{SM} {vr(O,16)}, {vr(BV+8*k,4)}, {vr(S[b],8)}, v{IDX}')
        ex(b,12)
        if k==6:
            for r in range(16): e(f'v_min_f32 v{C+r}, -v{TP+r}, -v6')
        if k<8: e(f's_cmp_eq_u32 {NT}, {k}\ns_cbranch_scc1 L_Bx{k}\ns_nop 1')
    for k in (8,7,6,5,4,3,2,1,0):
        if k<8: e(f'L_Bx{k}:')
        nop(2); e(f'{SM} {vr(O,16)}, {vr(BV+8*k+4,4)}, {vr(S[k&1]+8,8)}, v{IDX}')
        if k>0: e('s_branch L_Bdone')
    e('L_Bdone:'); nop(8);nop(8);nop(2)
    check('B'); stamp(); onorm(88)
    e(f'''s_lshl_b32 {T}, s91, 5
    s_add_u32 {T}, {T}, s92
    s_lshl_b32 {T}, {T}, 10
    s_add_u32 {T}, {T}, {OB}
    buffer_store_dwordx4 v[88:91], v4, {WS}, {T} offen sc1''')
def fbB():
    e(f'L_fbB:\ns_mov_b32 {FLG}, 16\nv_mov_b32 v1, 0xff800000')
    for k in range(9):
        if k in (0,8):
            for r in range(16): e(f'v_min_f32 v{S[0]+r}, 0, {"-" if k else ""}v{TP+r}' if k==0 else f'v_min_f32_e64 v{S[0]+r}, -v{TP+r}, 0')
            nop(2)
        e(f'{QK} {vr(S[0],16)}, {vr(BK+4*k,4)}, {vr(QB,4)}, {vr(S[0],16) if k in (0,8) else 0}')
        nop(8);nop(4); rowmax(1,S[0],True)
        if k<8: e(f's_cmp_eq_u32 {NT}, {k}\ns_cbranch_scc1 L_fbBd')
    e('L_fbBd:'); xhalf(1,2); e('v_mov_b32 v6, v1\ns_branch L_Brun')
def oload(br):
    base,rb,line,tgt,dst=((OA,RBA,f's_add_u32 {T}, {RBA}, 16',8,128),(OB,RBO,f's_add_u32 {T}, {RBB}, 48',16,160))[br]
    e(f'{line}\ns_lshl_b32 {T}, {T}, 8\nv_mov_b32 v2, {T}')
    poll((2,WS),tgt,3)
    e(f'''s_lshl_b32 {T}, {rb}, 1
    s_and_b32 {T2}, {SW}, 1
    s_add_u32 {T}, {T}, {T2}
    s_lshl_b32 {T}, {T}, 2
    s_lshr_b32 {T2}, {SW}, 1
    s_add_u32 {T}, {T}, {T2}
    s_lshl_b32 {T}, {T}, 13
    s_add_u32 {T}, {T}, {base}
    s_add_u32 {T2}, {T}, 4096''')
    for n in range(8): e(f'buffer_load_dwordx4 {vr(dst+4*n,4)}, v4, {WS}, {T if n<4 else T2} offen offset:{(n&3)*1024} sc1')
def oproj(br):
    R=(0,69632)[br]; fr=(128,160)[br]; a=(7,8) if br==0 else (9,10)
    def rd(n):
        for ct in range(2):
            for h in range(2): e(f'ds_read_b64_tr_b16 {vr(56+8*(n&1)+4*ct+2*h,2)}, v{a[ct]} offset:{2048*n+1024*h}')
    rd(0)
    for n in range(8):
        if n<7: rd(n+1)
        e(f's_waitcnt vmcnt({7-n}) lgkmcnt({4 if n<7 else 0})')
        for ct in range(2): e(f'{QK} {vr(24+16*ct,16)}, {vr(56+8*(n&1)+4*ct,4)}, {vr(fr+4*n,4)}, {vr(24+16*ct,16) if n else 0}')
    e('s_barrier'); nop(8); nop(4)
    for ct in range(2):
        for b in range(4): e(f'ds_write_b128 v{11+br}, {vr(24+16*ct+4*b,4)} offset:{128*ct+32*b}')
    e('s_waitcnt lgkmcnt(0)\ns_barrier')
    for kq in range(4):
        for h in range(2): e(f'ds_read_b128 {vr(192+8*kq+4*h,4)}, v{13+br} offset:{kq*64*272+16*h}')
    for kq in range(1,4):
        e(f's_waitcnt lgkmcnt({6-2*kq})')
        for i in range(0,8,2): e(f'v_pk_add_f32 {vr(192+i,2)}, {vr(192+i,2)}, {vr(192+8*kq+i,2)}')
    for i in range(4): e(f'v_cvt_pk_bf16_f32 v{224+4*br+i}, v{192+2*i}, v{192+2*i+1}')
    e(f'''s_lshl_b32 {T}, {(RBA,RBO)[br]}, 17
    s_add_u32 {T}, {T}, {br*1024}
    buffer_store_dwordx4 {vr(224+4*br,4)}, v15, {OUT}, {T} offen''')
def tail():
    e(f'''v_bfe_u32 v1, v0, 2, 2
    v_lshrrev_b32 v2, 5, v0
    v_lshl_add_u32 v3, v2, 2, v1
    v_lshlrev_b32 v3, 7, v3
    v_lshrrev_b32 v1, 1, v1
    v_lshl_add_u32 v3, v1, 6, v3
    v_and_b32 v1, 1, v23
    v_lshl_add_u32 v3, v1, 5, v3
    v_and_b32 v1, 3, v0
    v_lshl_add_u32 v3, v1, 3, v3
    s_lshr_b32 {T}, {SW}, 1
    s_lshl_b32 {T2}, {T}, 14
    v_add_u32 v7, {T2}, v3
    v_xor_b32 v8, 64, v7
    v_add_u32 v9, 69632, v7
    v_add_u32 v10, 69632, v8
    s_lshl_b32 {T}, {T}, 1
    s_and_b32 {T2}, {SW}, 1
    s_add_u32 {T}, {T}, {T2}
    s_lshl_b32 {T}, {T}, 5
    v_and_b32 v1, 31, v0
    v_add_u32 v1, {T}, v1
    v_mul_u32_u24 v1, 272, v1
    v_lshl_add_u32 v11, v2, 4, v1
    v_add_u32 v12, 69632, v11
    s_lshl_b32 {T}, {SW}, 3
    v_add_u32 v1, {T}, v21
    v_mul_u32_u24 v2, 272, v1
    v_lshl_add_u32 v13, v22, 5, v2
    v_add_u32 v14, 69632, v13
    v_lshlrev_b32 v1, 11, v1
    v_lshl_add_u32 v1, v22, 4, v1
    s_lshl_b32 {T}, {HG}, 7
    v_add_u32 v15, {T}, v1''')
    oload(0)
    e(f's_barrier\ns_cmp_lg_u32 {SW}, 7\ns_cbranch_scc1 L_n7d')
    signal(f's_add_u32 {T}, {RBB}, 48')
    e('s_waitcnt vmcnt(0)\nL_n7d:')
    stamp(); oproj(0); stamp(); oload(1); stamp(); oproj(1)
def build():
    e(f'; @launch grid=(256,1,1) block=(512,1,1) lds=163840')
    L[0]=L[0].strip()
    e(f'.amdgcn_target "amdgcn-amd-amdhsa--gfx950"\n.text\n.globl {NAME}_kernel\n.p2align 8\n.type {NAME}_kernel,@function\n{NAME}_kernel:')
    prologue(); projections(); bepi(); attnA(); attnB(); tail()
    if gen1.PROF:
        e('s_waitcnt vmcnt(0)'); stamp()
        e(f's_lshl_b32 {T}, s2, 3\ns_add_u32 {T}, {T}, {SW}\ns_lshl_b32 {T}, {T}, 6\ns_add_u32 {T}, {T}, {PRF}\nv_lshlrev_b32 v1, 2, v0\ns_mov_b64 exec, 0xffff\nbuffer_store_dword v255, v1, {WS}, {T} offen')
    e('s_waitcnt vmcnt(0)\nL_end:\ns_endpgm')
    side(); fbA(); fbB()
    e(f'''.section .rodata,"a"
    .p2align 6
    .amdhsa_kernel {NAME}_kernel
    .amdhsa_next_free_vgpr 256
    .amdhsa_next_free_sgpr 102
    .amdhsa_accum_offset 256
    .amdhsa_group_segment_fixed_size 0
    .amdhsa_kernarg_size 88
    .amdhsa_user_sgpr_count 2
    .amdhsa_user_sgpr_kernarg_segment_ptr 1
    .amdhsa_system_sgpr_workgroup_id_x 1
    .end_amdhsa_kernel''')
    return '\n'.join(L)+'\n'
if __name__=='__main__':
    for a in sys.argv[2:]:
        k,v=a.split('='); setattr(gen1,k,int(v)); globals()[k]=int(v)
    open(sys.argv[1],'w').write(build())
```

```python
import sys
NAME='concat_heads__grouped_kv_mqa__sliding_block__prompt'
L=[]
def e(s):
    for x in s.strip('\n').split('\n'): L.append('  '+x.strip() if not x.strip().endswith(':') else x.strip())
def vr(a,n): return f'v[{a}:{a+n-1}]'
def nop(n): e(f's_nop {n-1}')
PROF=False; PLV=1
POLLCH=11
SIGCH=5
CNT=0; KA=0x10000; VA=0x20000; KB=0x100000; VB=0x300000; OA=0x600000; OB=0x800000; PRF=0xA00000; WSSZ=0xB00000
XA,WQ,WKV,XB,WB,WOA,WOB,OUT,DBG,WS,MIX=[f's[{a}:{a+3}]' for a in (28,32,36,40,44,48,52,56,60,64,96)]
SW='s3'; RBA='s70'; HG='s71'; RBB='s72'; HP='s73'; T='s74'; T2='s75'; W1K='s76'; SD=['s77','s78','s79','s80']; MIXS='s81'; CB='s82'; RBO='s83'; FLG='s84'; IT='s85'; NT='s86'; SPIN='s87'
LSC=1
def LS(): return ' sc1' if LSC else ''
nst=[0]
def stamp(tag='',lvl=1):
    if PROF and (lvl==1 or lvl==PLV):
        e(f'; STAMP {tag}')
        e(f's_mem{"real" if PROF==1 else ""}time s[100:101]\ns_waitcnt lgkmcnt(0)\nv_writelane_b32 v255, s100, {nst[0]}'); nst[0]+=1
def srd(base,lo,size):
    e(f's_mov_b32 s{base}, s{lo}\ns_mov_b32 s{base+1}, s{lo+1}\ns_mov_b32 s{base+2}, {size}\ns_mov_b32 s{base+3}, 0x20000')
lab=[0]
def poll(voff,target,vt,pre_issued=False):
    lab[0]+=1; n=lab[0]
    e(f's_mov_b32 {SPIN}, 0x40000')
    if pre_issued: e(f's_branch L_pw{n}')
    e(f'L_pl{n}:\nbuffer_load_dword v{vt}, v{voff[0]}, {voff[1]}, 0 offen sc1\nL_pw{n}:\ns_waitcnt vmcnt(0)\nv_cmp_ne_u32 vcc, {target}, v{vt}\ns_sub_u32 {SPIN}, {SPIN}, 1\ns_cbranch_scc1 L_pd{n}\ns_cbranch_vccnz L_pl{n}\nL_pd{n}:')
def prologue():
    e(f'''s_cmp_ge_u32 s2, 256
    s_cbranch_scc1 L_end
    s_load_dwordx16 s[4:19], s[0:1], 0
    s_load_dwordx4 s[20:23], s[0:1], 64
    s_load_dwordx2 s[24:25], s[0:1], 80
    v_lshrrev_b32 v1, 6, v0
    v_and_b32 v0, 63, v0
    s_lshr_b32 s68, s2, 3
    v_readfirstlane_b32 {SW}, v1
    s_and_b32 s69, s2, 7
    s_lshr_b32 {T}, s68, 3
    s_lshl_b32 {RBA}, s69, 2
    s_add_u32 {RBA}, {RBA}, {T}
    s_and_b32 {HG}, s68, 7
    s_lshr_b32 {RBB}, s69, 1
    s_lshl_b32 {RBB}, {RBB}, 2
    s_add_u32 {RBB}, {RBB}, {T}
    s_and_b32 {T2}, s69, 1
    s_lshl_b32 {HP}, {T2}, 3
    s_add_u32 {HP}, {HP}, {HG}
    s_lshl_b32 {RBO}, {RBB}, 1
    s_add_u32 {RBO}, {RBO}, {T2}
    s_lshl_b32 {W1K}, {SW}, 10
    v_lshrrev_b32 v21, 3, v0
    v_and_b32 v22, 7, v0
    v_lshrrev_b32 v23, 4, v0''')
    e(f'''s_lshl_b32 {T}, {SW}, 2
    v_add_u32 v1, {T}, v23
    v_and_b32 v1, 7, v1
    v_xor_b32 v1, v1, v22
    v_lshlrev_b32 v1, 4, v1
    v_lshl_add_u32 v2, v21, 10, v1
    s_lshl_b32 {T}, {RBA}, 16
    s_lshl_b32 {T2}, {SW}, 13
    s_add_u32 {T}, {T}, {T2}
    v_add_u32 v2, {T}, v2''')
    e(f'''s_and_b32 {T}, {SW}, 1
    s_lshl_b32 {T}, {T}, 2
    v_and_b32 v1, 1, v23
    v_lshlrev_b32 v1, 1, v1
    v_or_b32 v1, {T}, v1
    v_xor_b32 v1, v1, v22
    v_lshlrev_b32 v1, 4, v1
    v_lshl_add_u32 v3, v21, 10, v1
    s_lshl_b32 {T}, {HG}, 7
    s_add_u32 {T}, {T}, {T2}
    v_add_u32 v3, {T}, v3''')
    e('s_waitcnt lgkmcnt(0)')
    srd(28,4,2097152); srd(32,6,524288)
    stamp('start')
    dmaA(0)
    e(f's_bitcmp1_b32 {HG}, 0\ns_cselect_b32 s36, s10, s8\ns_cselect_b32 s37, s11, s9\ns_mov_b32 s38, 16384\ns_mov_b32 s39, 0x20000')
    e(f's_lshl_b32 {T2}, {SW}, 11\nv_lshl_add_u32 v4, v0, 4, {T2}\ns_add_u32 m0, {T2}, {4*32768}\ns_nop 0')
    e(f'buffer_load_dwordx4 v4, {WKV}, 0 offen lds\nbuffer_load_dwordx4 v4, {WKV}, 0 offen offset:1024 lds'); issued(('s',0),2)
    srd(40,14,2097152); srd(44,16,1572864); srd(48,12,524288); srd(52,18,524288); srd(56,20,4194304); srd(60,22,256); srd(64,24,WSSZ)
    e(f'''s_cmp_lg_u32 s2, 0
    s_cbranch_scc1 L_noinit
    s_cmp_lg_u32 {SW}, 7
    s_cbranch_scc1 L_noinit
    v_lshlrev_b32 v1, 8, v0
    v_mov_b32 v24, 0
    buffer_store_dword v24, v1, {WS}, 0 offen sc1
    v_mov_b32 v25, 1
    s_waitcnt vmcnt(0)
    buffer_store_dword v25, v24, {DBG}, 0 offen sc1
    s_waitcnt vmcnt(0)
    L_noinit:''')
    dmaA(1)
    e(f's_cmp_lt_u32 {SW}, 2')
    for k in range(4): e(f's_cselect_b32 s{96+k}, s{40+k}, s{44+k}')
    e(f's_mov_b32 {T}, 128\ns_cselect_b32 {MIXS}, {T}, 196608')
    for n in range(4):
        e(f's_add_u32 s88, {SW}, {7*n}\ns_lshl_b32 {T}, s88, 10\ns_mov_b32 {SD[n]}, {T}')
        if n<3:
            e(f'''s_lshl_b32 {T}, s88, 2
            v_add_u32 v1, {T}, v23
            v_and_b32 v1, 7, v1
            v_xor_b32 v1, v1, v22
            v_lshlrev_b32 v1, 4, v1
            v_lshl_add_u32 v1, v21, 10, v1
            s_lshl_b32 {T}, {RBB}, 17
            s_lshl_b32 {T2}, s88, 13
            s_add_u32 {T}, {T}, {T2}
            v_add_u32 v{5+n}, {T}, v1''')
        if n>=2:
            if n==2: e(f's_cmp_lt_u32 {SW}, 2\ns_cbranch_scc1 L_skw')
            e(f'''s_sub_u32 {T}, s88, 16
            s_lshl_b32 {T}, {T}, 6
            v_add_u32 v1, {T}, v0
            v_mul_u32_u24 v24, 5462, v1
            v_lshrrev_b32 v24, 16, v24
            v_mul_u32_u24 v25, 12, v24
            v_sub_u32 v1, v1, v25
            v_lshrrev_b32 v25, 2, v24
            v_and_b32 v25, 2, v25
            v_xor_b32 v1, v1, v25
            v_mul_u32_u24 v24, 3072, v24
            v_lshrrev_b32 v25, 2, v1
            v_lshl_add_u32 v24, v25, 10, v24
            v_and_b32 v1, 3, v1
            v_lshl_add_u32 v24, v1, 4, v24
            s_lshl_b32 {T}, {HP}, 6
            v_add_u32 v{5+n}, {T}, v24''')
            if n==2: e('L_skw:')
    dmaA(2)
    e(f'''v_and_b32 v24, 15, v0
    v_bfe_u32 v25, v0, 1, 3
    v_xor_b32 v25, v25, v23
    v_lshlrev_b32 v25, 4, v25
    v_lshl_add_u32 v25, v24, 7, v25
    s_and_b32 {T}, {SW}, 1
    s_lshl_b32 {T}, {T}, 12
    v_add_u32 v9, {T}, v25
    s_lshr_b32 {T}, {HG}, 1
    s_lshl_b32 {T}, {T}, 11
    v_add_u32 v12, {T}, v25
    s_and_b32 {T}, {SW}, 3
    s_lshl_b32 {T}, {T}, 12
    v_add_u32 v124, {T}, v25
    v_bfe_u32 v26, v0, 2, 2
    v_lshl_add_u32 v27, v23, 3, v26
    v_and_b32 v28, 3, v0
    v_lshlrev_b32 v28, 3, v28
    v_and_b32 v29, 1, v23
    v_lshrrev_b32 v30, 1, v26
    v_lshl_or_b32 v30, v29, 1, v30
    s_lshr_b32 {T}, {SW}, 1
    v_xor_b32 v30, {T}, v30
    v_lshl_add_u32 v30, v30, 5, v28
    v_lshl_add_u32 v11, v27, 7, v30
    v_add_u32 v11, 8192, v11
    v_lshl_add_u32 v14, v27, 5, v28
    v_add_u32 v14, 131072, v14
    s_lshr_b32 {T}, {SW}, 2
    v_xor_b32 v29, {T}, v29
    v_lshl_add_u32 v29, v29, 5, v28
    v_mul_u32_u24 v27, 192, v27
    v_add3_u32 v125, v27, v29, 0
    v_add_u32 v125, 16384, v125
    v_xor_b32 v10, 64, v9
    v_xor_b32 v13, 64, v12''')
    dmaA(3)
    for r in range(80,116,2): e(f'v_mov_b64 {vr(r,2)}, 0')
vm=[]
def issued(tag,n=1): vm.extend([tag]*n)
def waitfor(tag):
    idx=[i for i,t in enumerate(vm) if t==tag]
    if not idx: return
    n=len(vm)-1-max(idx); e(f's_waitcnt vmcnt({n})'); del vm[:max(idx)+1]
def dmaA(st):
    for u in range(2):
        c=2*st+u
        for v,s,so,d in ((2,XA,c*128,0),(3,WQ,c*65536,8192)):
            e(f's_add_u32 m0, {W1K}, {c*16384+d}\ns_mov_b32 {T}, {so}\nbuffer_load_dwordx4 v{v}, {s}, {T} offen lds')
    issued(('s',st),4)
def dmaB(k):
    R=[]
    for n,s in enumerate((XB,XB,MIX,WB)):
        R.append(f's_add_u32 m0, {SD[n]}, {(k%5)*32768}\n'+(f's_mul_i32 {T}, {MIXS}, {k}' if n==2 else f's_mov_b32 {T}, {k*(128 if n<2 else 196608)}')+f'\nbuffer_load_dwordx4 v{5+n}, {s}, {T} offen lds')
    issued(('s',4+k),4)
    return R
M16='v_mfma_f32_16x16x32_bf16'
SET=[24,128]; KSET=[176,208]; STG=176
cur=[None]
def reads(st):
    A=st<4; sb=(st if A else (st-4)%5)*32768; hi,lo=sb&~0xFFFF,sb&0xFFFF; B=SET[st&1]; R=[]
    if st==4: e('v_mov_b32 v9, v124\nv_mov_b32 v11, v125\nv_xor_b32 v10, 64, v124'); cur[0]=None
    if cur[0]!=hi:
        for k in range(5 if A else 3): e(f'v_add_u32 v{15+k}, {hi}, v{9+k}')
        cur[0]=hi
    if A:
        for q in range(4):
            u,ks=q>>1,q&1
            for t in range(2): R.append(f'ds_read_b128 {vr(B+12*q+4*t,4)}, v{15+ks} offset:{lo+16384*u+2048*t}')
            for h in range(2): R.append(f'ds_read_b64_tr_b16 {vr(B+12*q+8+2*h,2)}, v17 offset:{lo+16384*u+4096*ks+512*h}')
    else:
        for ks in range(2):
            for t in range(2): R.append(f'ds_read_b128 {vr(B+20*ks+4*t,4)}, v{15+ks} offset:{lo+2048*t}')
            for s in range(3):
                for h in range(2): R.append(f'ds_read_b64_tr_b16 {vr(B+20*ks+8+4*s+2*h,2)}, v17 offset:{lo+6144*ks+768*h+64*s}')
    return R
def kvreads(st):
    lo=(st*32768)&0xFFFF; B=KSET[st&1]
    for q in range(4):
        u,ks=q>>1,q&1
        e(f'ds_read_b128 {vr(B+8*q,4)}, v{18+ks} offset:{lo+16384*u}')
        for h in range(2): e(f'ds_read_b64_tr_b16 {vr(B+8*q+4+2*h,2)}, v14 offset:{4096*st+1024*q+128*h}')
def kvmfma(st):
    B=KSET[st&1]
    e(f's_bitcmp1_b32 {HG}, 0\ns_cbranch_scc1 L_kv{st}')
    for q in range(4): e(f'{M16} v[88:91], {vr(B+8*q+4,4)}, {vr(B+8*q,4)}, v[88:91]')
    e(f's_branch L_kw{st}\nL_kv{st}:')
    for q in range(4): e(f'{M16} v[88:91], {vr(B+8*q,4)}, {vr(B+8*q+4,4)}, v[88:91]')
    e(f'L_kw{st}:')
def mfmas(st):
    B=SET[st&1]; R=[]
    if st<4:
        for q in range(4):
            for t in range(2): R.append(f'{M16} {vr(80+4*t,4)}, {vr(B+12*q+8,4)}, {vr(B+12*q+4*t,4)}, {vr(80+4*t,4)}')
    else:
        for ks in range(2):
            for s in range(3):
                for t in range(2):
                    x=vr(B+20*ks+4*t,4); w=vr(B+20*ks+8+4*s,4); a=vr(92+8*s+4*t,4)
                    R.append(f'{M16} {a}, {x}, {w}, {a}' if s==2 else f'{M16} {a}, {w}, {x}, {a}')
    return R
def mix(M,R):
    n=max(len(M),1); per=-(-len(R)//n)
    for i in range(n):
        if i<len(M): e(M[i])
        for x in R[i*per:(i+1)*per]: e(x)
def kvloads():
    e(f'v_lshlrev_b32 v1, 4, v0\ns_lshl_b32 {T}, {SW}, 11\ns_add_u32 s88, {T}, {KA}\ns_add_u32 s89, {T}, {VA}\ns_mul_i32 {T}, {SW}, 6144\ns_add_u32 s90, {T}, {KA+16384}\ns_add_u32 s91, {T}, {VA+16384}\ns_add_u32 s92, s90, 4096\ns_add_u32 s93, s91, 4096')
    R=[]
    for n in range(16):
        if n<4: so,off=88+(n>>1),(n&1)*1024
        else:
            m=(n-4)%6; so=90+(n-4)//6+(2 if m>=4 else 0); off=(m&3)*1024
        R.append(f'buffer_load_dwordx4 {vr(STG+4*n,4)}, v1, {WS}, s{so} offen offset:{off}{LS()}')
    issued('kv0',4); issued('kv1',12)
    return R
def step(st):
    if st==POLLCH:
        e(f's_cmp_lg_u32 {SW}, 7\ns_cbranch_scc1 L_n7p\nv_lshlrev_b32 v1, 8, v22')
        poll((1,WS),32,176); e('L_n7p:')
    waitfor(('s',st)); stamp(f'w{st}',2); e('s_barrier'); stamp(f'b{st}',2)
    R=reads(st); M=mfmas(st-1) if st else []
    D=[]
    for k in {1:[0],2:[1],3:[2],4:[3,4],5:[5],6:[6],7:[7]}.get(st,[]): D+=dmaB(k)
    if D or st<5:
        e(f's_cmp_eq_u32 {SW}, 7\ns_cbranch_scc1 L_w7_{st}')
        mix(M,D+R) if st else mix(M,R)
        e(f's_branch L_j{st}\nL_w7_{st}:')
        if st<4: kvreads(st)
        mix(M,R)
        if 0<st<5: kvmfma(st-1)
        if st<3: e(f's_waitcnt vmcnt({4*(2-st)})')
        e(f'L_j{st}:')
    else:
        if st==POLLCH: R=R+kvloads()
        mix(M,R)
    e('s_waitcnt lgkmcnt(0)')
SC=0x3EB8AA3B
def pack(dst,src,scale):
    if scale:
        for i in range(8): e(f'v_mul_f32 v{src+i}, {hex(SC)}, v{src+i}')
    for i in range(4): e(f'v_cvt_pk_bf16_f32 v{dst+i}, v{src+2*i}, v{src+2*i+1}')
    nop(2)
    e(f'v_permlane16_swap_b32 v{dst}, v{dst+2}\nv_permlane16_swap_b32 v{dst+1}, v{dst+3}')
def projections():
    for c in range(12):
        step(c)
        if c==4:
            nop(8); pack(116,80,True)
            e(f'''s_cmp_lg_u32 {SW}, 7
            s_cbranch_scc1 L_n7s
            v_cvt_pk_bf16_f32 v88, v88, v89
            v_cvt_pk_bf16_f32 v89, v90, v91
            s_lshl_b32 {T}, {RBA}, 1
            s_lshr_b32 {T2}, {HG}, 2
            s_add_u32 {T}, {T}, {T2}
            s_lshl_b32 {T}, {T}, 10
            s_bfe_u32 {T2}, {HG}, 0x10001
            s_bitcmp1_b32 {HG}, 0
            s_cselect_b32 s88, 9, 8
            s_cselect_b32 s89, 8, 9
            s_cselect_b32 s90, 2, 1
            s_lshl_b32 s90, s90, 16
            s_lshl_b32 {T2}, {T2}, s88
            s_add_u32 {T}, {T}, {T2}
            s_add_u32 {T}, {T}, s90
            v_lshrrev_b32 v1, 5, v0
            v_lshlrev_b32 v1, s89, v1
            v_and_b32 v90, 15, v0
            v_lshl_add_u32 v1, v90, 4, v1
            v_and_b32 v90, 1, v23
            v_lshl_add_u32 v1, v90, 3, v1
            buffer_store_dwordx2 v[88:89], v1, {WS}, {T} offen sc1
            v_mov_b32 v91, 0
            buffer_load_dword v90, v91, {DBG}, 0 offen sc1
            L_n7s:''')
            stamp('Aproj')
        if c==SIGCH:
            e(f's_cmp_lg_u32 {SW}, 7\ns_cbranch_scc1 L_n7g')
            poll((91,DBG),1,90,pre_issued=True)
            signal(f's_and_b32 {T}, s2, 7'); e('L_n7g:')
    for m in mfmas(11): e(m)
def signal(lineexpr):
    e(lineexpr)
    e(f's_lshl_b32 {T}, {T}, 8\nv_mov_b32 v1, 1\nv_mov_b32 v254, 0\ns_mov_b64 exec, 1\nbuffer_atomic_add v1, v254, {WS}, {T} offen sc1\ns_mov_b64 exec, -1')
```

```python
from gen1 import *
import gen1
QK='v_mfma_f32_32x32x16_bf16'; SM='v_smfmac_f32_32x32x32_bf16'
S=[24,40]; C=56; O=72; KF=[88,92]; V0=[96,100]; V1=[104,108]; IDX=112; VK=113; VV=114; QA=116; QB=120
BK=128; BV=164; TP=236; AORD=0; UNR=8; PRIO=1; UP=4; SIGK=2; POLK=7
SPLIT=1
def stage1():
    waitfor('kv1')
    for n in range(6): e(f'ds_write_b128 v10, {vr(STG+16+4*n,4)} offset:{1024*n}\nds_write_b128 v11, {vr(STG+40+4*n,4)} offset:{1088*n}')
def bepi():
    stamp('bepi0')
    nop(8); pack(120,92,True); pack(24,100,False); pack(28,108,False)
    e(f'''s_lshl_b32 s91, {RBB}, 2
    s_and_b32 {T}, {SW}, 3
    s_add_u32 s91, s91, {T}
    s_lshl_b32 s92, {HP}, 1
    s_lshr_b32 {T}, {SW}, 2
    s_add_u32 s92, s92, {T}
    s_lshl_b32 s93, s92, 6
    s_add_u32 s93, s93, s91
    s_lshl_b32 {T}, s93, 10
    s_add_u32 {T}, {T}, {KB}
    v_lshlrev_b32 v2, 4, v0
    buffer_store_dwordx4 v[24:27], v2, {WS}, {T} offen sc1
    s_mul_i32 {T}, s93, 1088
    s_add_u32 {T}, {T}, {VB}
    v_and_b32 v3, 1, v23
    v_lshrrev_b32 v4, 5, v0
    v_lshl_add_u32 v3, v3, 1, v4
    v_mul_u32_u24 v3, 272, v3
    v_and_b32 v5, 15, v0
    v_lshl_add_u32 v6, v5, 4, v3
    buffer_store_dwordx4 v[28:31], v6, {WS}, {T} offen sc1
    v_mov_b32 v32, 0x3f803f80
    v_mov_b32 v33, v32
    v_mov_b32 v34, v32
    v_mov_b32 v35, v32
    s_mov_b64 exec, 0x0001000100010001
    buffer_store_dwordx4 v[32:35], v3, {WS}, {T} offen offset:256 sc1
    s_mov_b64 exec, -1'''.replace('s_mov_b64 exec, 0x0001000100010001','s_mov_b32 exec_lo, 0x00010001\ns_mov_b32 exec_hi, 0x00010001'))
    issued('kb',3)
    e(f'''s_lshl_b32 {T}, {SW}, 11
    v_add_u32 v7, {T}, v2
    s_mul_i32 {T}, {SW}, 6144
    s_add_u32 {T}, {T}, 16384
    v_add_u32 v10, {T}, v2
    v_mul_u32_u24 v9, 272, v23
    v_lshl_add_u32 v9, v5, 4, v9
    s_mul_i32 {T}, {SW}, {6*1088}
    s_add_u32 {T}, {T}, {65536+16*1088}
    v_add_u32 v11, {T}, v9
    s_mul_i32 {T}, {SW}, {2*1088}
    s_add_u32 {T}, {T}, 65536
    v_add_u32 v9, {T}, v9
    v_and_b32 v8, 31, v0
    s_lshl_b32 {T}, {SW}, 5
    v_add_u32 v8, {T}, v8
    v_mul_u32_u24 v8, 272, v8
    v_add_u32 v8, {65536+256}, v8
    s_barrier
    ds_write_b128 v8, v[32:35]''')
    waitfor('kv0')
    for n in range(2): e(f'ds_write_b128 v7, {vr(STG+4*n,4)} offset:{1024*n}\nds_write_b128 v9, {vr(STG+8+4*n,4)} offset:{1088*n}')
    if not SPLIT: stage1()
    e(f'''    v_mov_b32 v{IDX}, 0xdddd
    v_and_b32 v1, 31, v0
    v_min_u32 v1, 16, v1
    v_lshlrev_b32 v1, 4, v1
    v_mul_u32_u24 v3, 272, v4
    v_add_u32 v115, v3, v1''')
    e('s_waitcnt lgkmcnt(0)\ns_barrier')
    SIDEVM[:]=gen1.vm
    stamp('stg')
def rowmax(dst,src,acc=False):
    r=list(range(src,src+16))
    if acc: e(f'v_max3_f32 v{dst}, v{dst}, v{r[0]}, v{r[1]}'); r=r[2:]
    else: e(f'v_max3_f32 v{dst}, v{r[0]}, v{r[1]}, v{r[2]}\nv_max_f32 v{dst}, v{dst}, v{r[3]}'); r=r[4:]
    for i in range(0,len(r),2): e(f'v_max3_f32 v{dst}, v{dst}, v{r[i]}, v{r[i+1]}')
def xhalf(dst,tmp):
    e(f'v_mov_b32 v{tmp}, v{dst}'); nop(2); e(f'v_permlane32_swap_b32 v{dst}, v{tmp}'); nop(1); e(f'v_max_f32 v{dst}, v{dst}, v{tmp}')
def ex(b,i0):
    for i in range(i0,i0+4): e(f'v_exp_f32 v{S[b]+i}, v{S[b]+i}')
def check(tag):
    e(f'''v_max3_f32 v1, |v{O}|, |v{O+1}|, |v{O+2}|
    v_max3_f32 v1, v1, |v{O+3}|, |v{O+4}|
    v_max3_f32 v1, v1, |v{O+5}|, |v{O+6}|
    v_add_f32 v2, v{O}, v{O+1}
    v_max_f32 v1, v1, |v{O+7}|''')
    for i in range(2,8): e(f'v_add_f32 v2, v2, v{O+i}')
    e(f'''v_cmp_nlt_f32 vcc, v{O+8}, v252
    v_cmp_nlt_f32 s[88:89], v1, v253
    s_or_b64 vcc, vcc, s[88:89]
    v_cmp_u_f32 s[88:89], v2, v2
    s_or_b64 vcc, vcc, s[88:89]
    s_cmp_eq_u32 {FLG}, 0
    s_cselect_b64 vcc, vcc, 0
    s_cmp_lg_u64 vcc, 0
    s_cbranch_scc1 L_fb{tag}''')
def onorm(dst):
    e(f'v_rcp_f32 v1, v{O+8}'); nop(1)
    for i in range(8): e(f'v_mul_f32 v{O+i}, v{O+i}, v1')
    for i in range(4): e(f'v_cvt_pk_bf16_f32 v{dst+i}, v{O+2*i}, v{O+2*i+1}')
def tiles(n,X):
    per=-(-len(X)//n)
    for t in range(n):
        b=t&1;o=b^1; x=X[t*per:(t+1)*per]
        ex(b,0); e(f'{SM} {vr(O,16)}, {vr(V1[o],4)}, {vr(S[o]+8,8)}, v{IDX}')
        if x: e(x[0])
        ex(b,4); e(f's_waitcnt lgkmcnt(0)\n{QK} {vr(S[o],16)}, {vr(KF[o],4)}, {vr(QA,4)}, {vr(C,16)}')
        e(f'ds_read_b128 {vr(KF[b],4)}, v{VK} offset:{1024*(t+2)}\nds_read_b128 {vr(V0[o],4)}, v{VV} offset:{1088*(t+1)}\nds_read_b128 {vr(V1[o],4)}, v{VV} offset:{1088*(t+1)+544}')
        ex(b,8); e(f'{SM} {vr(O,16)}, {vr(V0[b],4)}, {vr(S[b],8)}, v{IDX}')
        for y in x[1:]: e(y)
        if t==n-1: e(f'v_add_u32 v{VK}, {1024*n}, v{VK}\nv_add_u32 v{VV}, {1088*n}, v{VV}')
        ex(b,12)
def attnA():
    e(f'''v_lshlrev_b32 v{VK}, 4, v0
    v_mov_b32 v252, 0x71800000
    v_mov_b32 v253, 0x7e800000
    s_mov_b32 {FLG}, 0
    s_mov_b32 s95, {(1<<1)|(1<<(UP-1))|(1<<UP)|(1<<7)|(1<<8)}
    ds_read_b128 {vr(KF[0],4)}, v{VK}
    s_waitcnt lgkmcnt(0)
    {QK} {vr(S[0],16)}, {vr(KF[0],4)}, {vr(QA,4)}, 0''')
    nop(8);nop(4); rowmax(1,S[0]); xhalf(1,2)
    e(f'v_add_f32 v1, 0x42800000, v1\nL_Arun:')
    for i in range(16): e(f'v_sub_f32 v{C+i}, 0, v1')
    e(f'''v_lshlrev_b32 v{VK}, 4, v0
    v_add_u32 v{VV}, 65536, v115
    ds_read_b128 {vr(KF[0],4)}, v{VK}
    ds_read_b128 {vr(KF[1],4)}, v{VK} offset:1024
    ds_read_b128 {vr(V0[0],4)}, v{VV}
    ds_read_b128 {vr(V1[0],4)}, v{VV} offset:544''')
    for r in list(range(O,O+16,2))+list(range(S[1]+8,S[1]+16,2))+[V1[1],V1[1]+2]: e(f'v_mov_b64 {vr(r,2)}, 0')
    e(f's_waitcnt lgkmcnt(3)\n{QK} {vr(S[0],16)}, {vr(KF[0],4)}, {vr(QA,4)}, {vr(C,16)}\ns_mov_b32 {IT}, 0')
    nop(8);nop(4)
    if PRIO: e('s_setprio 3')
    e('L_Aloop:')
    tiles(8,[])
    e(f'''s_add_u32 {IT}, {IT}, 1
    s_bitcmp1_b32 s95, {IT}
    s_cbranch_scc0 L_Aloop
    s_cmp_lg_u32 {IT}, 8
    s_cbranch_scc1 L_side''')
    nop(1)
    e(f'{SM} {vr(O,16)}, {vr(V1[1],4)}, {vr(S[1]+8,8)}, v{IDX}')
    e('s_waitcnt lgkmcnt(0)\ns_setprio 0')
    nop(8);nop(8);nop(2)
    check('A'); stamp('Aend'); onorm(88)
    e(f'''s_lshl_b32 {T}, {RBA}, 1
    s_and_b32 {T2}, {SW}, 1
    s_add_u32 {T}, {T}, {T2}
    s_lshl_b32 {T}, {T}, 3
    s_add_u32 {T}, {T}, {HG}
    s_lshl_b32 {T}, {T}, 2
    s_lshr_b32 {T2}, {SW}, 1
    s_add_u32 {T}, {T}, {T2}
    s_lshl_b32 {T}, {T}, 10
    s_add_u32 {T}, {T}, {OA}
    v_lshlrev_b32 v4, 4, v0
    buffer_store_dwordx4 v[88:91], v4, {WS}, {T} offen sc1''')
SIDEVM=[]
def side():
    gen1.vm[:]=SIDEVM
    e(f'L_side:\ns_cmp_lg_u32 {IT}, 1\ns_cbranch_scc1 L_side2')
    stage1(); waitfor('kb')
    e(f's_waitcnt lgkmcnt(0)\ns_barrier\ns_cmp_lg_u32 {SW}, 7\ns_cbranch_scc1 L_Aloop')
    signal(f's_and_b32 {T}, s2, 7\ns_add_u32 {T}, {T}, 8')
    e(f'''s_branch L_Aloop
    L_side2:
    s_cmp_lg_u32 {IT}, 7
    s_cbranch_scc1 L_side3
    s_setprio 0
    s_branch L_Aloop
    L_side3:
    s_cmp_eq_u32 {IT}, {UP}
    s_cbranch_scc1 L_side4
    v_lshlrev_b32 v2, 8, v22
    v_add_u32 v2, 2048, v2
    buffer_load_dword v3, v2, {WS}, 0 offen sc1
    s_lshl_b32 {T}, {SW}, 16
    s_lshl_b32 {T2}, {HG}, 7
    s_add_u32 {T}, {T}, {T2}
    v_lshlrev_b32 v4, 10, v0
    buffer_load_dword v5, v4, {WOA}, {T} offen
    buffer_load_dword v6, v4, {WOB}, {T} offen
    s_sub_u32 {T}, s93, 8
    s_lshl_b32 {T2}, {T}, 10
    s_add_u32 s77, {T2}, {KB}
    s_add_u32 s78, s77, 4096
    s_add_u32 s79, s77, 8192
    s_mul_i32 {T2}, {T}, 1088
    s_add_u32 s80, {T2}, {VB}
    s_add_u32 s81, s80, 4352
    s_add_u32 s82, s80, 8704
    s_min_u32 {NT}, s91, 8
    s_branch L_Aloop
    L_side4:''')
    poll((2,WS),32,3,pre_issued=True)
    e('v_lshlrev_b32 v4, 4, v0')
    if PRIO: e('s_setprio 2')
    X=[]
    for k in range(9):
        q=8-k
        X.append(f'buffer_load_dwordx4 {vr(BK+4*k,4)}, v4, {WS}, s{77+q//4} offen offset:{(q&3)*1024}{LS()}')
        for h in range(2): X.append(f'buffer_load_dwordx4 {vr(BV+8*k+4*h,4)}, v115, {WS}, s{80+q//4} offen offset:{(q&3)*1088+544*h}{LS()}')
    tiles(16,X)
    if PRIO: e('s_setprio 1')
    e(f's_mov_b32 {IT}, {UP+2}\ns_branch L_Aloop')
def fbA():
    e(f'''L_fbA:
    s_mov_b32 {FLG}, 16
    s_mov_b32 s95, 256
    v_lshlrev_b32 v{VK}, 4, v0
    v_mov_b32 v1, 0xff800000
    s_mov_b32 {IT}, 0
    L_fbAl:
    ds_read_b128 {vr(KF[0],4)}, v{VK}
    v_add_u32 v{VK}, 1024, v{VK}
    s_waitcnt lgkmcnt(0)
    {QK} {vr(S[0],16)}, {vr(KF[0],4)}, {vr(QA,4)}, 0''')
    nop(8);nop(4); rowmax(1,S[0],True)
    e(f's_add_u32 {IT}, {IT}, 1\ns_cmp_lt_u32 {IT}, 64\ns_cbranch_scc1 L_fbAl')
    xhalf(1,2); e('s_branch L_Arun')
def wodma(i):
    br,n=i>>3,i&7
    return f's_add_u32 m0, s94, {(0,69632)[br]+n*1024}\ns_mov_b32 {T}, {n*8192}\nbuffer_load_dwordx4 v5, {(WOA,WOB)[br]}, {T} offen lds'
DPT=3; BPK=5
def w7(f):
    lab[0]+=1; n=lab[0]; e(f's_cmp_lg_u32 {SW}, 7\ns_cbranch_scc1 L_w7x{n}'); f(); e(f'L_w7x{n}:')
def act(k0,k1,main=False):
    lab[0]+=1; n=lab[0]; e(f's_cmp_lg_u32 {FLG}, 0\ns_cbranch_scc1 L_ac{n}')
    for k in range(k0,k1):
        if k==SIGK:
            e(f's_waitcnt vmcnt({min(16,DPT*k)})')
            if main: stamp('Bsig',4)
            e('s_barrier'); w7(lambda: signal(f's_add_u32 {T}, {RBA}, 16'))
        for i in range(DPT*k,min(16,DPT*k+DPT)): e(wodma(i))
        if k==POLK: w7(lambda: pollissue(0))
        if main and k==BPK: e('s_setprio 0')
    e(f'L_ac{n}:')
def bexits():
    for k in range(8):
        e(f'L_Bx{k}:'); nop(2); e(f'{SM} {vr(O,16)}, {vr(BV+8*k+4,4)}, {vr(S[k&1]+8,8)}, v{IDX}')
        act(k+1,9); e('s_branch L_Bdone')
def pollissue(br):
    e(f's_add_u32 {T}, {(RBA,RBB)[br]}, {(16,48)[br]}\ns_lshl_b32 {T}, {T}, 8\nv_mov_b32 v2, {T}\nbuffer_load_dword v3, v2, {WS}, 0 offen sc1')
FR=[[88,92,96,100,104,108,116,124],list(range(160,192,4))]
def attnB():
    e(f'''v_and_b32 v1, 31, v0
    v_lshrrev_b32 v2, 5, v0
    v_lshlrev_b32 v2, 2, v2
    v_sub_u32 v1, v1, v2
    v_cvt_f32_i32 v1, v1
    v_mov_b32 v2, 0x5d800000
    s_mov_b32 {FLG}, 0''')
    import struct
    for r in range(16):
        jr=8*(r>>2)+(r&3); k=struct.unpack('<I',struct.pack('<f',(0.5-jr)*2.0**60))[0]
        e(f'v_fmaak_f32 v{TP+r}, v1, v2, {hex(k)}')
    for r in range(16): e(f'v_min_f32 v{S[0]+r}, 0, v{TP+r}')
    e(f's_waitcnt vmcnt(1)\n{QK} {vr(S[0],16)}, {vr(BK,4)}, {vr(QB,4)}, {vr(S[0],16)}')
    e(f'''v_and_b32 v1, 1, v23
    v_lshlrev_b32 v1, 2, v1
    v_xor_b32 v1, v1, v22
    v_lshlrev_b32 v1, 4, v1
    v_lshl_add_u32 v5, v21, 10, v1
    s_lshl_b32 {T}, {SW}, 16
    s_lshl_b32 {T2}, {HG}, 7
    s_add_u32 {T}, {T}, {T2}
    v_add_u32 v5, {T}, v5
    s_lshl_b32 s94, {SW}, 13''')
    nop(4); rowmax(1,S[0]); xhalf(1,2)
    e('v_add_f32 v6, 0x42800000, v1\ns_barrier\ns_setprio 1')
    stamp('Bbar')
    e('L_Brun:')
    for r in range(16): e(f'v_min_f32 v{S[0]+r}, v{TP+r}, -v6')
    for r in range(O,O+16,2): e(f'v_mov_b64 {vr(r,2)}, 0')
    e(f'{QK} {vr(S[0],16)}, {vr(BK,4)}, {vr(QB,4)}, {vr(S[0],16)}')
    for i in range(16): e(f'v_sub_f32 v{C+i}, 0, v6')
    for k in range(9):
        b=k&1;o=b^1
        ex(b,0)
        if k>0: e(f'{SM} {vr(O,16)}, {vr(BV+8*(k-1)+4,4)}, {vr(S[o]+8,8)}, v{IDX}')
        ex(b,4)
        if k==6: pass
        if k<8: e(f'{QK} {vr(S[o],16)}, {vr(BK+4*(k+1),4)}, {vr(QB,4)}, {vr(C,16)}')
        ex(b,8)
        e(f'{SM} {vr(O,16)}, {vr(BV+8*k,4)}, {vr(S[b],8)}, v{IDX}')
        ex(b,12)
        if k==6:
            for r in range(16): e(f'v_min_f32 v{C+r}, -v{TP+r}, -v6')
        act(k,k+1,True)
        if k<8: e(f's_cmp_eq_u32 {NT}, {k}\ns_cbranch_scc1 L_Bx{k}\ns_nop 1')
    nop(2); e(f'{SM} {vr(O,16)}, {vr(BV+8*8+4,4)}, {vr(S[0]+8,8)}, v{IDX}')
    e(f'L_Bdone:\ns_setprio 0\ns_cmp_lg_u32 {FLG}, 0\ns_cbranch_scc1 L_Bd2')
    stamp('Bd',4); oload(0)
    e('L_Bd2:'); nop(8);nop(8);nop(2)
    check('B'); stamp('Bend'); onorm(72)
    e(f'''s_lshl_b32 {T}, s91, 5
    s_add_u32 {T}, {T}, s92
    s_lshl_b32 {T}, {T}, 10
    s_add_u32 {T}, {T}, {OB}
    buffer_store_dwordx4 v[72:75], v4, {WS}, {T} offen sc1''')
def fbB():
    e(f'L_fbB:\ns_mov_b32 {FLG}, 16\nv_mov_b32 v1, 0xff800000')
    for k in range(9):
        if k in (0,8):
            for r in range(16): e(f'v_min_f32 v{S[0]+r}, 0, {"-" if k else ""}v{TP+r}' if k==0 else f'v_min_f32_e64 v{S[0]+r}, -v{TP+r}, 0')
            nop(2)
        e(f'{QK} {vr(S[0],16)}, {vr(BK+4*k,4)}, {vr(QB,4)}, {vr(S[0],16) if k in (0,8) else 0}')
        nop(8);nop(4); rowmax(1,S[0],True)
        if k<8: e(f's_cmp_eq_u32 {NT}, {k}\ns_cbranch_scc1 L_fbBd')
    e('L_fbBd:'); xhalf(1,2); e('v_mov_b32 v6, v1\ns_branch L_Brun')
def oload(br):
    base,rb,tgt=((OA,RBA,8),(OB,RBO,16))[br]
    w7(lambda: poll((2,WS),tgt,3,pre_issued=True)); e('s_waitcnt vmcnt(0)\ns_barrier'); stamp('pol',4)
    e(f'''s_lshl_b32 {T}, {rb}, 1
    s_and_b32 {T2}, {SW}, 1
    s_add_u32 {T}, {T}, {T2}
    s_lshl_b32 {T}, {T}, 2
    s_lshr_b32 {T2}, {SW}, 1
    s_add_u32 {T}, {T}, {T2}
    s_lshl_b32 {T}, {T}, 13
    s_add_u32 {T}, {T}, {base}
    s_add_u32 {T2}, {T}, 4096''')
    for n in range(8): e(f'buffer_load_dwordx4 {vr(FR[br][n],4)}, v4, {WS}, {T if n<4 else T2} offen offset:{(n&3)*1024}{LS()}')
def oproj(br):
    R=(0,69632)[br]; fr=(128,160)[br]; a=(7,8) if br==0 else (9,10)
    def rd(n):
        for ct in range(2):
            for h in range(2): e(f'ds_read_b64_tr_b16 {vr(56+8*(n&1)+4*ct+2*h,2)}, v{a[ct]} offset:{2048*n+1024*h}')
    rd(0)
    for n in range(8):
        if n<7: rd(n+1)
        e(f's_waitcnt vmcnt({8-n}) lgkmcnt({4 if n<7 else 0})')
        for ct in range(2): e(f'{QK} {vr(24+16*ct,16)}, {vr(56+8*(n&1)+4*ct,4)}, {vr(FR[br][n],4)}, {vr(24+16*ct,16) if n else 0}')
    if br==0: stamp('mA',4); e('s_waitcnt vmcnt(0)'); stamp('Bst',4)
    e('s_barrier'); nop(8); nop(4)
    if br==0: w7(lambda: signal(f's_add_u32 {T}, {RBB}, 48'))
    for ct in range(2):
        for b in range(4): e(f'ds_write_b128 v{11+br}, {vr(24+16*ct+4*b,4)} offset:{128*ct+32*b}')
    e('s_waitcnt lgkmcnt(0)\ns_barrier')
    stamp('part',4)
    if br==0: w7(lambda: pollissue(1))
    for kq in range(4):
        for h in range(2): e(f'ds_read_b128 {vr(192+8*kq+4*h,4)}, v{13+br} offset:{kq*64*272+16*h}')
    for kq in range(1,4):
        e(f's_waitcnt lgkmcnt({6-2*kq})')
        for i in range(0,8,2): e(f'v_pk_add_f32 {vr(192+i,2)}, {vr(192+i,2)}, {vr(192+8*kq+i,2)}')
    for i in range(4): e(f'v_cvt_pk_bf16_f32 v{224+4*br+i}, v{192+2*i}, v{192+2*i+1}')
    if br==0: stamp('oA'); oload(1); stamp('oBld')
    e(f'''s_lshl_b32 {T}, {(RBA,RBO)[br]}, 17
    s_add_u32 {T}, {T}, {br*1024}
    buffer_store_dwordx4 {vr(224+4*br,4)}, v15, {OUT}, {T} offen''')
def tail():
    e(f'''v_bfe_u32 v1, v0, 2, 2
    v_lshrrev_b32 v2, 5, v0
    v_lshl_add_u32 v3, v2, 2, v1
    v_lshlrev_b32 v3, 7, v3
    v_lshrrev_b32 v1, 1, v1
    v_lshl_add_u32 v3, v1, 6, v3
    v_and_b32 v1, 1, v23
    v_lshl_add_u32 v3, v1, 5, v3
    v_and_b32 v1, 3, v0
    v_lshl_add_u32 v3, v1, 3, v3
    s_lshr_b32 {T}, {SW}, 1
    s_lshl_b32 {T2}, {T}, 14
    v_add_u32 v7, {T2}, v3
    v_xor_b32 v8, 64, v7
    v_add_u32 v9, 69632, v7
    v_add_u32 v10, 69632, v8
    s_lshl_b32 {T}, {T}, 1
    s_and_b32 {T2}, {SW}, 1
    s_add_u32 {T}, {T}, {T2}
    s_lshl_b32 {T}, {T}, 5
    v_and_b32 v1, 31, v0
    v_add_u32 v1, {T}, v1
    v_mul_u32_u24 v1, 272, v1
    v_lshl_add_u32 v11, v2, 4, v1
    v_add_u32 v12, 69632, v11
    s_lshl_b32 {T}, {SW}, 3
    v_add_u32 v1, {T}, v21
    v_mul_u32_u24 v2, 272, v1
    v_lshl_add_u32 v13, v22, 5, v2
    v_add_u32 v14, 69632, v13
    v_lshlrev_b32 v1, 11, v1
    v_lshl_add_u32 v1, v22, 4, v1
    s_lshl_b32 {T}, {HG}, 7
    v_add_u32 v15, {T}, v1''')
    stamp('oAld'); oproj(0); oproj(1)
def build():
    e(f'; @launch grid=(256,1,1) block=(512,1,1) lds=163840')
    L[0]=L[0].strip()
    e(f'.amdgcn_target "amdgcn-amd-amdhsa--gfx950"\n.text\n.globl {NAME}_kernel\n.p2align 8\n.type {NAME}_kernel,@function\n{NAME}_kernel:')
    prologue(); projections(); bepi(); attnA(); attnB(); tail()
    if gen1.PROF:
        e('s_waitcnt vmcnt(0)'); stamp('end')
        e(f's_lshl_b32 {T}, s2, 3\ns_add_u32 {T}, {T}, {SW}\ns_lshl_b32 {T}, {T}, 8\ns_add_u32 {T}, {T}, {PRF}\nv_lshlrev_b32 v1, 2, v0\nbuffer_store_dword v255, v1, {WS}, {T} offen')
    e('L_end:\ns_endpgm')
    side(); bexits(); fbA(); fbB()
    e(f'''.section .rodata,"a"
    .p2align 6
    .amdhsa_kernel {NAME}_kernel
    .amdhsa_next_free_vgpr 256
    .amdhsa_next_free_sgpr 102
    .amdhsa_accum_offset 256
    .amdhsa_group_segment_fixed_size 0
    .amdhsa_kernarg_size 88
    .amdhsa_user_sgpr_count 2
    .amdhsa_user_sgpr_kernarg_segment_ptr 1
    .amdhsa_system_sgpr_workgroup_id_x 1
    .end_amdhsa_kernel''')
    return '\n'.join(L)+'\n'
if __name__=='__main__':
    for a in sys.argv[2:]:
        k,v=a.split('='); setattr(gen1,k,int(v)); globals()[k]=int(v)
    open(sys.argv[1],'w').write(build())
```

```python
import sys
NAME='concat_heads__grouped_kv_mqa__sliding_block__prompt'
L=[]
def e(s):
    for x in s.strip('\n').split('\n'): L.append('  '+x.strip() if not x.strip().endswith(':') else x.strip())
def vr(a,n): return f'v[{a}:{a+n-1}]'
def nop(n): e(f's_nop {n-1}')
PROF=False; PLV=1
POLLCH=11
SIGCH=5
CNT=0; KA=0x10000; VA=0x20000; KB=0x100000; VB=0x300000; OA=0x600000; OB=0x800000; PRF=0xA00000; WSSZ=0xB00000
XA,WQ,WKV,XB,WB,WOA,WOB,OUT,DBG,WS,MIX=[f's[{a}:{a+3}]' for a in (28,32,36,40,44,48,52,56,60,64,96)]
SW='s3'; RBA='s70'; HG='s71'; RBB='s72'; HP='s73'; T='s74'; T2='s75'; W1K='s76'; SD=['s77','s78','s79','s80']; MIXS='s81'; CB='s82'; RBO='s83'; FLG='s84'; IT='s85'; NT='s86'; SPIN='s87'
LSC=1
def LS(): return ' sc1' if LSC else ''
nst=[0]
def stamp(tag='',lvl=1):
    if PROF and (lvl==1 or lvl==PLV):
        e(f'; STAMP {tag}')
        e(f's_mem{"real" if PROF==1 else ""}time s[100:101]\ns_waitcnt lgkmcnt(0)\nv_writelane_b32 v255, s100, {nst[0]}'); nst[0]+=1
def srd(base,lo,size):
    e(f's_mov_b32 s{base}, s{lo}\ns_mov_b32 s{base+1}, s{lo+1}\ns_mov_b32 s{base+2}, {size}\ns_mov_b32 s{base+3}, 0x20000')
lab=[0]
def poll(voff,target,vt,pre_issued=False):
    lab[0]+=1; n=lab[0]
    e(f's_mov_b32 {SPIN}, 0x40000')
    if pre_issued: e(f's_branch L_pw{n}')
    e(f'L_pl{n}:\nbuffer_load_dword v{vt}, v{voff[0]}, {voff[1]}, 0 offen sc1\nL_pw{n}:\ns_waitcnt vmcnt(0)\nv_cmp_ne_u32 vcc, {target}, v{vt}\ns_sub_u32 {SPIN}, {SPIN}, 1\ns_cbranch_scc1 L_pd{n}\ns_cbranch_vccnz L_pl{n}\nL_pd{n}:')
def prologue():
    e(f'''s_cmp_ge_u32 s2, 256
    s_cbranch_scc1 L_end
    s_load_dwordx16 s[4:19], s[0:1], 0
    s_load_dwordx4 s[20:23], s[0:1], 64
    s_load_dwordx2 s[24:25], s[0:1], 80
    v_lshrrev_b32 v1, 6, v0
    v_and_b32 v0, 63, v0
    s_lshr_b32 s68, s2, 3
    v_readfirstlane_b32 {SW}, v1
    s_and_b32 s69, s2, 7
    s_lshr_b32 {T}, s68, 3
    s_lshl_b32 {RBA}, s69, 2
    s_add_u32 {RBA}, {RBA}, {T}
    s_and_b32 {HG}, s68, 7
    s_lshr_b32 {RBB}, s69, 1
    s_lshl_b32 {RBB}, {RBB}, 2
    s_add_u32 {RBB}, {RBB}, {T}
    s_and_b32 {T2}, s69, 1
    s_lshl_b32 {HP}, {T2}, 3
    s_add_u32 {HP}, {HP}, {HG}
    s_lshl_b32 {RBO}, {RBB}, 1
    s_add_u32 {RBO}, {RBO}, {T2}
    s_lshl_b32 {W1K}, {SW}, 10
    v_lshrrev_b32 v21, 3, v0
    v_and_b32 v22, 7, v0
    v_lshrrev_b32 v23, 4, v0''')
    e(f'''s_lshl_b32 {T}, {SW}, 2
    v_add_u32 v1, {T}, v23
    v_and_b32 v1, 7, v1
    v_xor_b32 v1, v1, v22
    v_lshlrev_b32 v1, 4, v1
    v_lshl_add_u32 v2, v21, 10, v1
    s_lshl_b32 {T}, {RBA}, 16
    s_lshl_b32 {T2}, {SW}, 13
    s_add_u32 {T}, {T}, {T2}
    v_add_u32 v2, {T}, v2''')
    e(f'''s_and_b32 {T}, {SW}, 1
    s_lshl_b32 {T}, {T}, 2
    v_and_b32 v1, 1, v23
    v_lshlrev_b32 v1, 1, v1
    v_or_b32 v1, {T}, v1
    v_xor_b32 v1, v1, v22
    v_lshlrev_b32 v1, 4, v1
    v_lshl_add_u32 v3, v21, 10, v1
    s_lshl_b32 {T}, {HG}, 7
    s_add_u32 {T}, {T}, {T2}
    v_add_u32 v3, {T}, v3''')
    e('s_waitcnt lgkmcnt(0)')
    srd(28,4,2097152); srd(32,6,524288)
    stamp('start')
    dmaA(0)
    e(f's_bitcmp1_b32 {HG}, 0\ns_cselect_b32 s36, s10, s8\ns_cselect_b32 s37, s11, s9\ns_mov_b32 s38, 16384\ns_mov_b32 s39, 0x20000')
    e(f's_lshl_b32 {T2}, {SW}, 11\nv_lshl_add_u32 v4, v0, 4, {T2}\ns_add_u32 m0, {T2}, {4*32768}\ns_nop 0')
    e(f'buffer_load_dwordx4 v4, {WKV}, 0 offen lds\nbuffer_load_dwordx4 v4, {WKV}, 0 offen offset:1024 lds'); issued(('s',0),2)
    srd(40,14,2097152); srd(44,16,1572864); srd(48,12,524288); srd(52,18,524288); srd(56,20,4194304); srd(60,22,256); srd(64,24,WSSZ)
    e(f'''s_cmp_lg_u32 s2, 0
    s_cbranch_scc1 L_noinit
    s_cmp_lg_u32 {SW}, 7
    s_cbranch_scc1 L_noinit
    v_lshlrev_b32 v1, 8, v0
    v_mov_b32 v24, 0
    buffer_store_dword v24, v1, {WS}, 0 offen sc1
    v_mov_b32 v25, 1
    s_waitcnt vmcnt(0)
    buffer_store_dword v25, v24, {DBG}, 0 offen sc1
    s_waitcnt vmcnt(0)
    L_noinit:''')
    dmaA(1)
    e(f's_cmp_lt_u32 {SW}, 2')
    for k in range(4): e(f's_cselect_b32 s{96+k}, s{40+k}, s{44+k}')
    e(f's_mov_b32 {T}, 128\ns_cselect_b32 {MIXS}, {T}, 196608')
    for n in range(4):
        e(f's_add_u32 s88, {SW}, {7*n}\ns_lshl_b32 {T}, s88, 10\ns_mov_b32 {SD[n]}, {T}')
        if n<3:
            e(f'''s_lshl_b32 {T}, s88, 2
            v_add_u32 v1, {T}, v23
            v_and_b32 v1, 7, v1
            v_xor_b32 v1, v1, v22
            v_lshlrev_b32 v1, 4, v1
            v_lshl_add_u32 v1, v21, 10, v1
            s_lshl_b32 {T}, {RBB}, 17
            s_lshl_b32 {T2}, s88, 13
            s_add_u32 {T}, {T}, {T2}
            v_add_u32 v{5+n}, {T}, v1''')
        if n>=2:
            if n==2: e(f's_cmp_lt_u32 {SW}, 2\ns_cbranch_scc1 L_skw')
            e(f'''s_sub_u32 {T}, s88, 16
            s_lshl_b32 {T}, {T}, 6
            v_add_u32 v1, {T}, v0
            v_mul_u32_u24 v24, 5462, v1
            v_lshrrev_b32 v24, 16, v24
            v_mul_u32_u24 v25, 12, v24
            v_sub_u32 v1, v1, v25
            v_lshrrev_b32 v25, 2, v24
            v_and_b32 v25, 2, v25
            v_xor_b32 v1, v1, v25
            v_mul_u32_u24 v24, 3072, v24
            v_lshrrev_b32 v25, 2, v1
            v_lshl_add_u32 v24, v25, 10, v24
            v_and_b32 v1, 3, v1
            v_lshl_add_u32 v24, v1, 4, v24
            s_lshl_b32 {T}, {HP}, 6
            v_add_u32 v{5+n}, {T}, v24''')
            if n==2: e('L_skw:')
    dmaA(2)
    e(f'''v_and_b32 v24, 15, v0
    v_bfe_u32 v25, v0, 1, 3
    v_xor_b32 v25, v25, v23
    v_lshlrev_b32 v25, 4, v25
    v_lshl_add_u32 v25, v24, 7, v25
    s_and_b32 {T}, {SW}, 1
    s_lshl_b32 {T}, {T}, 12
    v_add_u32 v9, {T}, v25
    s_lshr_b32 {T}, {HG}, 1
    s_lshl_b32 {T}, {T}, 11
    v_add_u32 v12, {T}, v25
    s_and_b32 {T}, {SW}, 3
    s_lshl_b32 {T}, {T}, 12
    v_add_u32 v124, {T}, v25
    v_bfe_u32 v26, v0, 2, 2
    v_lshl_add_u32 v27, v23, 3, v26
    v_and_b32 v28, 3, v0
    v_lshlrev_b32 v28, 3, v28
    v_and_b32 v29, 1, v23
    v_lshrrev_b32 v30, 1, v26
    v_lshl_or_b32 v30, v29, 1, v30
    s_lshr_b32 {T}, {SW}, 1
    v_xor_b32 v30, {T}, v30
    v_lshl_add_u32 v30, v30, 5, v28
    v_lshl_add_u32 v11, v27, 7, v30
    v_add_u32 v11, 8192, v11
    v_lshl_add_u32 v14, v27, 5, v28
    v_add_u32 v14, 131072, v14
    s_lshr_b32 {T}, {SW}, 2
    v_xor_b32 v29, {T}, v29
    v_lshl_add_u32 v29, v29, 5, v28
    v_mul_u32_u24 v27, 192, v27
    v_add3_u32 v125, v27, v29, 0
    v_add_u32 v125, 16384, v125
    v_xor_b32 v10, 64, v9
    v_xor_b32 v13, 64, v12''')
    dmaA(3)
    for r in range(80,116,2): e(f'v_mov_b64 {vr(r,2)}, 0')
vm=[]
def issued(tag,n=1): vm.extend([tag]*n)
def waitfor(tag):
    idx=[i for i,t in enumerate(vm) if t==tag]
    if not idx: return
    n=len(vm)-1-max(idx); e(f's_waitcnt vmcnt({n})'); del vm[:max(idx)+1]
PFP=3
def prefetch():
    e(f'''s_cmp_ge_u32 {SW}, 2
    s_cbranch_scc1 L_pf1
    s_lshr_b32 {T}, s69, 1
    s_lshl_b32 {T}, {T}, 12
    s_lshl_b32 {T2}, s68, 7
    s_add_u32 {T}, {T}, {T2}
    s_lshl_b32 {T2}, {SW}, 6
    s_add_u32 {T}, {T}, {T2}
    v_add_lshl_u32 v1, {T}, v0, 7
    buffer_load_dword v240, v1, {XB}, 0 offen
    s_branch L_pfd
    L_pf1:
    s_cmp_ge_u32 {SW}, 5
    s_cbranch_scc1 L_pf2
    s_mul_i32 {T}, s68, 192
    s_lshl_b32 {T2}, {SW}, 6
    s_add_u32 {T}, {T}, {T2}
    s_sub_u32 {T}, {T}, 128
    v_add_u32 v1, {T}, v0
    v_mul_u32_u24 v241, 5462, v1
    v_lshrrev_b32 v241, 16, v241
    v_mul_u32_u24 v242, 12, v241
    v_sub_u32 v1, v1, v242
    v_mul_u32_u24 v241, 3072, v241
    v_lshrrev_b32 v242, 2, v1
    v_lshl_add_u32 v241, v242, 10, v241
    v_and_b32 v1, 3, v1
    v_lshl_add_u32 v1, v1, 7, v241
    s_and_b32 {T}, s69, 1
    s_lshl_b32 {T}, {T}, 9
    buffer_load_dword v240, v1, {WB}, {T} offen
    s_branch L_pfd
    L_pf2:
    s_cmp_ge_u32 {SW}, 6
    s_cbranch_scc1 L_pf3
    v_mul_u32_u24 v1, 163840, v0
    buffer_load_dword v240, v1, {WS}, 0 offen
    s_branch L_pfd
    L_pf3:
    v_lshlrev_b32 v1, 16, v0
    buffer_load_dword v240, v1, {OUT}, 0 offen
    L_pfd:''')
    issued('pf')
def dmaA(st):
    for u in range(2):
        c=2*st+u
        for v,s,so,d in ((2,XA,c*128,0),(3,WQ,c*65536,8192)):
            e(f's_add_u32 m0, {W1K}, {c*16384+d}\ns_mov_b32 {T}, {so}\nbuffer_load_dwordx4 v{v}, {s}, {T} offen lds')
    issued(('s',st),4)
    if st==PFP: prefetch()
def dmaB(k):
    R=[]
    for n,s in enumerate((XB,XB,MIX,WB)):
        R.append(f's_add_u32 m0, {SD[n]}, {(k%5)*32768}\n'+(f's_mul_i32 {T}, {MIXS}, {k}' if n==2 else f's_mov_b32 {T}, {k*(128 if n<2 else 196608)}')+f'\nbuffer_load_dwordx4 v{5+n}, {s}, {T} offen lds')
    issued(('s',4+k),4)
    return R
M16='v_mfma_f32_16x16x32_bf16'
SET=[24,128]; KSET=[176,208]; STG=176
cur=[None]
def reads(st):
    A=st<4; sb=(st if A else (st-4)%5)*32768; hi,lo=sb&~0xFFFF,sb&0xFFFF; B=SET[st&1]; R=[]
    if st==4: e('v_mov_b32 v9, v124\nv_mov_b32 v11, v125\nv_xor_b32 v10, 64, v124'); cur[0]=None
    if cur[0]!=hi:
        for k in range(5 if A else 3): e(f'v_add_u32 v{15+k}, {hi}, v{9+k}')
        cur[0]=hi
    if A:
        for q in range(4):
            u,ks=q>>1,q&1
            for t in range(2): R.append(f'ds_read_b128 {vr(B+12*q+4*t,4)}, v{15+ks} offset:{lo+16384*u+2048*t}')
            for h in range(2): R.append(f'ds_read_b64_tr_b16 {vr(B+12*q+8+2*h,2)}, v17 offset:{lo+16384*u+4096*ks+512*h}')
    else:
        for ks in range(2):
            for t in range(2): R.append(f'ds_read_b128 {vr(B+20*ks+4*t,4)}, v{15+ks} offset:{lo+2048*t}')
            for s in range(3):
                for h in range(2): R.append(f'ds_read_b64_tr_b16 {vr(B+20*ks+8+4*s+2*h,2)}, v17 offset:{lo+6144*ks+768*h+64*s}')
    return R
def kvreads(st):
    lo=(st*32768)&0xFFFF; B=KSET[st&1]
    for q in range(4):
        u,ks=q>>1,q&1
        e(f'ds_read_b128 {vr(B+8*q,4)}, v{18+ks} offset:{lo+16384*u}')
        for h in range(2): e(f'ds_read_b64_tr_b16 {vr(B+8*q+4+2*h,2)}, v14 offset:{4096*st+1024*q+128*h}')
def kvmfma(st):
    B=KSET[st&1]
    e(f's_bitcmp1_b32 {HG}, 0\ns_cbranch_scc1 L_kv{st}')
    for q in range(4): e(f'{M16} v[88:91], {vr(B+8*q+4,4)}, {vr(B+8*q,4)}, v[88:91]')
    e(f's_branch L_kw{st}\nL_kv{st}:')
    for q in range(4): e(f'{M16} v[88:91], {vr(B+8*q,4)}, {vr(B+8*q+4,4)}, v[88:91]')
    e(f'L_kw{st}:')
def mfmas(st):
    B=SET[st&1]; R=[]
    if st<4:
        for q in range(4):
            for t in range(2): R.append(f'{M16} {vr(80+4*t,4)}, {vr(B+12*q+8,4)}, {vr(B+12*q+4*t,4)}, {vr(80+4*t,4)}')
    else:
        for ks in range(2):
            for s in range(3):
                for t in range(2):
                    x=vr(B+20*ks+4*t,4); w=vr(B+20*ks+8+4*s,4); a=vr(92+8*s+4*t,4)
                    R.append(f'{M16} {a}, {x}, {w}, {a}' if s==2 else f'{M16} {a}, {w}, {x}, {a}')
    return R
def mix(M,R):
    n=max(len(M),1); per=-(-len(R)//n)
    for i in range(n):
        if i<len(M): e(M[i])
        for x in R[i*per:(i+1)*per]: e(x)
def kvloads(g):
    n,t0=((3,0),(5,24))[g]
    e(f's_mul_i32 {T}, {SW}, {n*1024}\ns_add_u32 s77, {T}, {KA+t0*1024}\ns_add_u32 s78, {T}, {VA+t0*1024}\ns_add_u32 s79, s77, 4096\ns_add_u32 s80, s78, 4096')
    R=[f'buffer_load_dwordx4 {vr(STG+24*g+8*m+4*v,4)}, v{(2,20)[g]}, {WS}, s{77+v+(2 if m>=4 else 0)} offen offset:{(m&3)*1024}{LS()}' for m in range(n) for v in range(2)]
    issued(f'kv{g}',2*n)
    return R
KLB=94208
def addrs():
    e(f'''s_lshl_b32 s91, {RBB}, 2
    s_and_b32 {T}, {SW}, 3
    s_add_u32 s91, s91, {T}
    s_lshl_b32 s92, {HP}, 1
    s_lshr_b32 {T}, {SW}, 2
    s_add_u32 s92, s92, {T}
    s_lshl_b32 s93, s92, 6
    s_add_u32 s93, s93, s91
    v_lshlrev_b32 v2, 4, v0
    v_and_b32 v3, 1, v23
    v_lshrrev_b32 v4, 5, v0
    v_lshl_add_u32 v3, v3, 1, v4
    v_mul_u32_u24 v249, 272, v3
    v_and_b32 v5, 15, v0
    v_lshl_add_u32 v248, v5, 4, v249
    s_mul_i32 {T}, {SW}, 3072
    s_add_u32 {T}, {T}, {KLB}
    v_add_u32 v243, {T}, v2
    s_mul_i32 {T}, {SW}, 5120
    s_add_u32 {T}, {T}, {KLB+24576}
    v_add_u32 v245, {T}, v2
    v_mul_u32_u24 v6, 272, v23
    v_lshl_add_u32 v6, v5, 4, v6
    s_mul_i32 {T}, {SW}, {5*1088}
    s_add_u32 {T}, {T}, {24*1088}
    v_add_u32 v246, {T}, v6
    s_mul_i32 {T}, {SW}, {3*1088}
    v_add_u32 v244, {T}, v6
    s_mul_i32 {T}, {SW}, 12
    v_min_u32 v6, 11, v5
    v_add_u32 v6, {T}, v6
    v_mul_u32_u24 v6, 272, v6
    v_add_u32 v247, 256, v6
    v_and_b32 v1, 31, v0
    v_min_u32 v6, 19, v1
    s_mul_i32 {T}, {SW}, 20
    s_add_u32 {T}, {T}, 96
    v_add_u32 v6, {T}, v6
    v_mul_u32_u24 v6, 272, v6
    v_add_u32 v251, 256, v6
    v_min_u32 v1, 16, v1
    v_lshlrev_b32 v1, 4, v1
    v_mul_u32_u24 v3, 272, v4
    v_add_u32 v250, v3, v1
    v_mov_b32 v4, 0x3f803f80
    v_mov_b32 v5, v4
    v_mov_b32 v6, v4
    v_mov_b32 v7, v4''')
def stage0():
    waitfor('kv0'); e('ds_write_b128 v247, v[4:7]')
    for n in range(3): e(f'ds_write_b128 v243, {vr(STG+8*n,4)} offset:{1024*n}\nds_write_b128 v244, {vr(STG+8*n+4,4)} offset:{1088*n}')
def step(st):
    if st==8: addrs()
    if st==POLLCH:
        e(f's_cmp_lg_u32 {SW}, 7\ns_cbranch_scc1 L_n7p\nv_lshlrev_b32 v1, 8, v22')
        poll((1,WS),32,176); e('L_n7p:')
    waitfor(('s',st)); stamp(f'w{st}',2); e('s_barrier'); stamp(f'b{st}',2)
    if st==0 and PFP==4: prefetch()
    R=reads(st); M=mfmas(st-1) if st else []
    D=[]
    for k in {1:[0],2:[1],3:[2],4:[3,4],5:[5],6:[6],7:[7]}.get(st,[]): D+=dmaB(k)
    if D or st<5:
        e(f's_cmp_eq_u32 {SW}, 7\ns_cbranch_scc1 L_w7_{st}')
        mix(M,D+R) if st else mix(M,R)
        e(f's_branch L_j{st}\nL_w7_{st}:')
        if st<4: kvreads(st)
        mix(M,R)
        if 0<st<5: kvmfma(st-1)
        if st<3: e(f's_waitcnt vmcnt({4*(2-st)+(1 if PFP>st and PFP<5 else 0)})')
        e(f'L_j{st}:')
    else:
        if st==POLLCH: R=R+kvloads(0)
        mix(M,R)
        if st==11 and POLLCH<11: stage0()
    e('s_waitcnt lgkmcnt(0)')
SC=0x3EB8AA3B
def pack(dst,src,scale):
    if scale:
        for i in range(8): e(f'v_mul_f32 v{src+i}, {hex(SC)}, v{src+i}')
    for i in range(4): e(f'v_cvt_pk_bf16_f32 v{dst+i}, v{src+2*i}, v{src+2*i+1}')
    nop(2)
    e(f'v_permlane16_swap_b32 v{dst}, v{dst+2}\nv_permlane16_swap_b32 v{dst+1}, v{dst+3}')
def projections():
    for c in range(12):
        step(c)
        if c==4:
            nop(8); pack(116,80,True)
            e(f'''s_cmp_lg_u32 {SW}, 7
            s_cbranch_scc1 L_n7s
            v_cvt_pk_bf16_f32 v88, v88, v89
            v_cvt_pk_bf16_f32 v89, v90, v91
            s_lshl_b32 {T}, {RBA}, 1
            s_lshr_b32 {T2}, {HG}, 2
            s_add_u32 {T}, {T}, {T2}
            s_lshl_b32 {T}, {T}, 10
            s_bfe_u32 {T2}, {HG}, 0x10001
            s_bitcmp1_b32 {HG}, 0
            s_cselect_b32 s88, 9, 8
            s_cselect_b32 s89, 8, 9
            s_cselect_b32 s90, 2, 1
            s_lshl_b32 s90, s90, 16
            s_lshl_b32 {T2}, {T2}, s88
            s_add_u32 {T}, {T}, {T2}
            s_add_u32 {T}, {T}, s90
            v_lshrrev_b32 v1, 5, v0
            v_lshlrev_b32 v1, s89, v1
            v_and_b32 v90, 15, v0
            v_lshl_add_u32 v1, v90, 4, v1
            v_and_b32 v90, 1, v23
            v_lshl_add_u32 v1, v90, 3, v1
            buffer_store_dwordx2 v[88:89], v1, {WS}, {T} offen sc1
            v_mov_b32 v91, 0
            buffer_load_dword v90, v91, {DBG}, 0 offen sc1
            L_n7s:''')
            stamp('Aproj')
        if c==SIGCH:
            e(f's_cmp_lg_u32 {SW}, 7\ns_cbranch_scc1 L_n7g')
            poll((91,DBG),1,90,pre_issued=True)
            signal(f's_and_b32 {T}, s2, 7'); e('L_n7g:')
    for m in mfmas(11): e(m)
def signal(lineexpr):
    e(lineexpr)
    e(f's_lshl_b32 {T}, {T}, 8\nv_mov_b32 v1, 1\nv_mov_b32 v254, 0\ns_mov_b64 exec, 1\nbuffer_atomic_add v1, v254, {WS}, {T} offen sc1\ns_mov_b64 exec, -1')
```

```python
import sys
NAME='concat_heads__grouped_kv_mqa__sliding_block__prompt'
L=[]
def e(s):
    for x in s.strip('\n').split('\n'): L.append('  '+x.strip() if not x.strip().endswith(':') else x.strip())
def vr(a,n): return f'v[{a}:{a+n-1}]'
def nop(n): e(f's_nop {n-1}')
PROF=False; PLV=1
POLLCH=15
SIGCH=9
CNT=0; KA=0x10000; VA=0x20000; KB=0x100000; VB=0x300000; OA=0x600000; OB=0x800000; PRF=0xA00000; WSSZ=0xB00000
XA,WQ,WKV,XB,WB,WOA,WOB,OUT,DBG,WS,MIX=[f's[{a}:{a+3}]' for a in (28,32,36,40,44,48,52,56,60,64,96)]
SW='s3'; RBA='s70'; HG='s71'; RBB='s72'; HP='s73'; T='s74'; T2='s75'; W1K='s76'; SD=['s77','s78','s79','s80']; MIXS='s81'; CB='s82'; RBO='s83'; FLG='s84'; IT='s85'; NT='s86'; SPIN='s87'
nst=[0]
def stamp(tag='',lvl=1):
    if PROF and (lvl==1 or lvl==PLV):
        e(f'; STAMP {tag}')
        e(f's_mem{"real" if PROF==1 else ""}time s[100:101]\ns_waitcnt lgkmcnt(0)\nv_writelane_b32 v255, s100, {nst[0]}'); nst[0]+=1
def srd(base,lo,size):
    e(f's_mov_b32 s{base}, s{lo}\ns_mov_b32 s{base+1}, s{lo+1}\ns_mov_b32 s{base+2}, {size}\ns_mov_b32 s{base+3}, 0x20000')
lab=[0]
def poll(voff,target,vt,pre_issued=False):
    lab[0]+=1; n=lab[0]
    e(f's_mov_b32 {SPIN}, 0x40000')
    if pre_issued: e(f's_branch L_pw{n}')
    e(f'L_pl{n}:\nbuffer_load_dword v{vt}, v{voff[0]}, {voff[1]}, 0 offen sc1\nL_pw{n}:\ns_waitcnt vmcnt(0)\nv_cmp_ne_u32 vcc, {target}, v{vt}\ns_sub_u32 {SPIN}, {SPIN}, 1\ns_cbranch_scc1 L_pd{n}\ns_cbranch_vccnz L_pl{n}\nL_pd{n}:')
def prologue():
    e(f'''s_cmp_ge_u32 s2, 256
    s_cbranch_scc1 L_end
    s_load_dwordx16 s[4:19], s[0:1], 0
    s_load_dwordx4 s[20:23], s[0:1], 64
    s_load_dwordx2 s[24:25], s[0:1], 80
    v_lshrrev_b32 v1, 6, v0
    v_and_b32 v0, 63, v0
    s_lshr_b32 s68, s2, 3
    v_readfirstlane_b32 {SW}, v1
    s_and_b32 s69, s2, 7
    s_lshr_b32 {T}, s68, 3
    s_lshl_b32 {RBA}, s69, 2
    s_add_u32 {RBA}, {RBA}, {T}
    s_and_b32 {HG}, s68, 7
    s_lshr_b32 {RBB}, s69, 1
    s_lshl_b32 {RBB}, {RBB}, 2
    s_add_u32 {RBB}, {RBB}, {T}
    s_and_b32 {T2}, s69, 1
    s_lshl_b32 {HP}, {T2}, 3
    s_add_u32 {HP}, {HP}, {HG}
    s_lshl_b32 {RBO}, {RBB}, 1
    s_add_u32 {RBO}, {RBO}, {T2}
    s_lshl_b32 {W1K}, {SW}, 10
    v_lshrrev_b32 v21, 3, v0
    v_and_b32 v22, 7, v0
    v_lshrrev_b32 v23, 4, v0''')
    e(f'''s_lshl_b32 {T}, {SW}, 2
    v_add_u32 v1, {T}, v23
    v_and_b32 v1, 7, v1
    v_xor_b32 v1, v1, v22
    v_lshlrev_b32 v1, 4, v1
    v_lshl_add_u32 v2, v21, 10, v1
    s_lshl_b32 {T}, {RBA}, 16
    s_lshl_b32 {T2}, {SW}, 13
    s_add_u32 {T}, {T}, {T2}
    v_add_u32 v2, {T}, v2''')
    e(f'''s_and_b32 {T}, {SW}, 1
    s_lshl_b32 {T}, {T}, 2
    v_and_b32 v1, 1, v23
    v_lshlrev_b32 v1, 1, v1
    v_or_b32 v1, {T}, v1
    v_xor_b32 v1, v1, v22
    v_lshlrev_b32 v1, 4, v1
    v_lshl_add_u32 v3, v21, 10, v1
    s_lshl_b32 {T}, {HG}, 7
    s_add_u32 {T}, {T}, {T2}
    v_add_u32 v3, {T}, v3''')
    e(f'''s_cmp_lt_u32 {SW}, 2
    s_cselect_b32 {T}, {W1K}, 0x40000000
    v_lshl_add_u32 v4, v0, 4, {T}
    s_waitcnt lgkmcnt(0)''')
    srd(28,4,2097152); srd(32,6,524288)
    e(f's_bitcmp1_b32 {HG}, 0\ns_cselect_b32 s36, s10, s8\ns_cselect_b32 s37, s11, s9\ns_mov_b32 s38, 16384\ns_mov_b32 s39, 0x20000')
    stamp()
    for c in range(4): dma(c)
    srd(40,14,2097152); srd(44,16,1572864); srd(48,12,524288); srd(52,18,524288); srd(56,20,4194304); srd(60,22,256); srd(64,24,WSSZ)
    e(f'''s_cmp_lg_u32 s2, 0
    s_cbranch_scc1 L_noinit
    s_cmp_lg_u32 {SW}, 7
    s_cbranch_scc1 L_noinit
    v_lshlrev_b32 v1, 8, v0
    v_mov_b32 v24, 0
    buffer_store_dword v24, v1, {WS}, 0 offen sc1
    v_mov_b32 v25, 1
    s_waitcnt vmcnt(0)
    buffer_store_dword v25, v24, {DBG}, 0 offen sc1
    s_waitcnt vmcnt(0)
    L_noinit:''')
    e(f's_cmp_lt_u32 {SW}, 2')
    for k in range(4): e(f's_cselect_b32 s{96+k}, s{40+k}, s{44+k}')
    e(f's_mov_b32 {T}, 128\ns_cselect_b32 {MIXS}, {T}, 196608')
    for n in range(4):
        e(f's_add_u32 s88, {SW}, {7*n}\ns_lshl_b32 {T}, s88, 10\ns_cmp_lt_u32 {SW}, 7\ns_cselect_b32 {SD[n]}, {T}, {28672+1024*n}')
        if n<3:
            e(f'''s_lshl_b32 {T}, s88, 2
            v_add_u32 v1, {T}, v23
            v_and_b32 v1, 7, v1
            v_xor_b32 v1, v1, v22
            v_lshlrev_b32 v1, 4, v1
            v_lshl_add_u32 v1, v21, 10, v1
            s_lshl_b32 {T}, {RBB}, 17
            s_lshl_b32 {T2}, s88, 13
            s_add_u32 {T}, {T}, {T2}
            v_add_u32 v{5+n}, {T}, v1''')
        if n>=2:
            if n==2: e(f's_cmp_lt_u32 {SW}, 2\ns_cbranch_scc1 L_skw')
            e(f'''s_sub_u32 {T}, s88, 16
            s_lshl_b32 {T}, {T}, 6
            v_add_u32 v1, {T}, v0
            v_mul_u32_u24 v24, 5462, v1
            v_lshrrev_b32 v24, 16, v24
            v_mul_u32_u24 v25, 12, v24
            v_sub_u32 v1, v1, v25
            v_lshrrev_b32 v25, 2, v24
            v_and_b32 v25, 2, v25
            v_xor_b32 v1, v1, v25
            v_mul_u32_u24 v24, 3072, v24
            v_lshrrev_b32 v25, 2, v1
            v_lshl_add_u32 v24, v25, 10, v24
            v_and_b32 v1, 3, v1
            v_lshl_add_u32 v24, v1, 4, v24
            s_lshl_b32 {T}, {HP}, 6
            v_add_u32 v{5+n}, {T}, v24''')
            if n==2: e('L_skw:')
    e(f's_cmp_lt_u32 {SW}, 7\ns_cbranch_scc1 L_n7a')
    for n in range(4): e(f'v_mov_b32 v{5+n}, 0x40000000')
    e('L_n7a:')
    e(f'''v_and_b32 v24, 15, v0
    v_bfe_u32 v25, v0, 1, 3
    v_xor_b32 v25, v25, v23
    v_lshlrev_b32 v25, 4, v25
    v_lshl_add_u32 v25, v24, 7, v25
    s_and_b32 {T}, {SW}, 1
    s_lshl_b32 {T}, {T}, 12
    v_add_u32 v9, {T}, v25
    s_lshr_b32 {T}, {HG}, 1
    s_lshl_b32 {T}, {T}, 11
    v_add_u32 v12, {T}, v25
    s_and_b32 {T}, {SW}, 3
    s_lshl_b32 {T}, {T}, 12
    v_add_u32 v124, {T}, v25
    v_bfe_u32 v26, v0, 2, 2
    v_lshl_add_u32 v27, v23, 3, v26
    v_and_b32 v28, 3, v0
    v_lshlrev_b32 v28, 3, v28
    v_and_b32 v29, 1, v23
    v_lshrrev_b32 v30, 1, v26
    v_lshl_or_b32 v30, v29, 1, v30
    s_lshr_b32 {T}, {SW}, 1
    v_xor_b32 v30, {T}, v30
    v_lshl_add_u32 v30, v30, 5, v28
    v_lshl_add_u32 v11, v27, 7, v30
    v_add_u32 v11, 8192, v11
    v_lshl_add_u32 v14, v27, 5, v28
    v_add_u32 v14, 16384, v14
    s_lshr_b32 {T}, {SW}, 2
    v_xor_b32 v29, {T}, v29
    v_lshl_add_u32 v29, v29, 5, v28
    v_mul_u32_u24 v27, 192, v27
    v_add3_u32 v125, v27, v29, 0
    v_add_u32 v125, 16384, v125
    v_xor_b32 v10, 64, v9
    v_xor_b32 v13, 64, v12''')
    for r in range(80,116,2): e(f'v_mov_b64 {vr(r,2)}, 0')
vm=[]
def issued(tag,n=1): vm.extend([tag]*n)
def waitfor(tag):
    idx=[i for i,t in enumerate(vm) if t==tag]
    if not idx: return
    n=len(vm)-1-max(idx); e(f's_waitcnt vmcnt({n})'); del vm[:max(idx)+1]
def dma(c):
    sb=(c%5)*32768
    if c<8:
        for v,s,so,d in ((2,XA,c*128,0),(3,WQ,c*65536,8192),(4,WKV,c*2048,16384)):
            e(f's_add_u32 m0, {W1K}, {sb+d}\ns_mov_b32 {T}, {so}\nbuffer_load_dwordx4 v{v}, {s}, {T} offen lds')
        issued(('c',c),3)
    else:
        k=c-8
        for n,s in enumerate((XB,XB,MIX,WB)):
            e(f's_add_u32 m0, {SD[n]}, {sb}')
            e(f's_mul_i32 {T}, {MIXS}, {k}' if n==2 else f's_mov_b32 {T}, {k*(128 if n<2 else 196608)}')
            e(f'buffer_load_dwordx4 v{5+n}, {s}, {T} offen lds')
        issued(('c',c),4)
M16='v_mfma_f32_16x16x32_bf16'
cur=[None]
def chunk(c):
    A=c<8; sb=(c%5)*32768; hi,lo=sb&~0xFFFF,sb&0xFFFF
    if c==POLLCH:
        e(f's_cmp_lg_u32 {SW}, 7\ns_cbranch_scc1 L_n7p\nv_lshlrev_b32 v1, 8, v22')
        poll((1,WS),32,24); e('L_n7p:')
    waitfor(('c',c)); stamp(f'w{c}',2); e('s_barrier'); stamp(f'b{c}',2)
    if c==8: e('v_mov_b32 v9, v124\nv_mov_b32 v11, v125\nv_xor_b32 v10, 64, v124'); cur[0]=None
    if cur[0]!=hi:
        for k in range(6 if A else 3): e(f'v_add_u32 v{15+k}, {hi}, v{9+k}')
        cur[0]=hi
    ns=1 if A else 3
    for ks in range(2):
        for t in range(2): e(f'ds_read_b128 {vr(24+8*ks+4*t,4)}, v{15+ks} offset:{lo+2048*t}')
        for s in range(ns):
            for h in range(2):
                off=lo+(4096*ks+512*h if A else 6144*ks+768*h+64*s)
                e(f'ds_read_b64_tr_b16 {vr(40+12*ks+4*s+2*h,2)}, v17 offset:{off}')
    if c+4<16: dma(c+4)
    if c==POLLCH:
        e(f'v_lshlrev_b32 v1, 4, v0\ns_lshl_b32 {T2}, {SW}, 14\nv_add_u32 v1, {T2}, v1')
        for n in range(16):
            if n%4==0: e(f's_mov_b32 {T}, {KA+n*1024}')
            e(f'buffer_load_dwordx4 {vr(128+4*n,4)}, v1, {WS}, {T} offen offset:{(n%4)*1024} sc1')
        issued('kv',16)
    for ks in range(2):
        e(f's_waitcnt lgkmcnt({(2+2*ns) if ks==0 else 0})')
        for s in range(ns):
            for t in range(2):
                x=vr(24+8*ks+4*t,4); w=vr(40+12*ks+4*s,4); a=vr((80 if A else 92+8*s)+4*t,4)
                e(f'{M16} {a}, {x}, {w}, {a}' if s==2 else f'{M16} {a}, {w}, {x}, {a}')
    if A:
        e(f's_cmp_lg_u32 {SW}, 7\ns_cbranch_scc1 L_nk{c}')
        for ks in range(2):
            e(f'ds_read_b128 {vr(64+4*ks,4)}, v{18+ks} offset:{lo}')
            for h in range(2): e(f'ds_read_b64_tr_b16 {vr(72+4*ks+2*h,2)}, v20 offset:{lo+1024*ks+128*h}')
        e(f's_bitcmp1_b32 {HG}, 0\ns_waitcnt lgkmcnt(0)\ns_cbranch_scc1 L_kv{c}')
        for ks in range(2): e(f'{M16} v[88:91], {vr(72+4*ks,4)}, {vr(64+4*ks,4)}, v[88:91]')
        e(f's_branch L_nk{c}\nL_kv{c}:')
        for ks in range(2): e(f'{M16} v[88:91], {vr(64+4*ks,4)}, {vr(72+4*ks,4)}, v[88:91]')
        e(f'L_nk{c}:')
SC=0x3EB8AA3B
def pack(dst,src,scale):
    if scale:
        for i in range(8): e(f'v_mul_f32 v{src+i}, {hex(SC)}, v{src+i}')
    for i in range(4): e(f'v_cvt_pk_bf16_f32 v{dst+i}, v{src+2*i}, v{src+2*i+1}')
    nop(2)
    e(f'v_permlane16_swap_b32 v{dst}, v{dst+2}\nv_permlane16_swap_b32 v{dst+1}, v{dst+3}')
def projections():
    for c in range(16):
        chunk(c)
        if c==7:
            nop(8); pack(116,80,True)
            e(f'''s_cmp_lg_u32 {SW}, 7
            s_cbranch_scc1 L_n7s
            v_cvt_pk_bf16_f32 v88, v88, v89
            v_cvt_pk_bf16_f32 v89, v90, v91
            s_lshl_b32 {T}, {RBA}, 1
            s_lshr_b32 {T2}, {HG}, 2
            s_add_u32 {T}, {T}, {T2}
            s_lshl_b32 {T}, {T}, 10
            s_bfe_u32 {T2}, {HG}, 0x10001
            s_bitcmp1_b32 {HG}, 0
            s_cselect_b32 s88, 9, 8
            s_cselect_b32 s89, 8, 9
            s_cselect_b32 s90, 2, 1
            s_lshl_b32 s90, s90, 16
            s_lshl_b32 {T2}, {T2}, s88
            s_add_u32 {T}, {T}, {T2}
            s_add_u32 {T}, {T}, s90
            v_lshrrev_b32 v1, 5, v0
            v_lshlrev_b32 v1, s89, v1
            v_and_b32 v90, 15, v0
            v_lshl_add_u32 v1, v90, 4, v1
            v_and_b32 v90, 1, v23
            v_lshl_add_u32 v1, v90, 3, v1
            buffer_store_dwordx2 v[88:89], v1, {WS}, {T} offen sc1
            v_mov_b32 v91, 0
            buffer_load_dword v90, v91, {DBG}, 0 offen sc1
            L_n7s:''')
            stamp()
        if c==SIGCH:
            e(f's_cmp_lg_u32 {SW}, 7\ns_cbranch_scc1 L_n7g')
            poll((91,DBG),1,90,pre_issued=True)
            signal(f's_and_b32 {T}, s2, 7'); e('L_n7g:')
def signal(lineexpr):
    e(lineexpr)
    e(f's_lshl_b32 {T}, {T}, 8\nv_mov_b32 v1, 1\nv_mov_b32 v254, 0\ns_mov_b64 exec, 1\nbuffer_atomic_add v1, v254, {WS}, {T} offen sc1\ns_mov_b64 exec, -1')
```

```python
from gen1 import *
import gen1
QK='v_mfma_f32_32x32x16_bf16'; SM='v_smfmac_f32_32x32x32_bf16'
S=[24,40]; C=56; O=72; KF=[88,92]; V0=[96,100]; V1=[104,108]; IDX=112; VK=113; VV=114; QA=116; QB=120
BK=128; BV=164; TP=236; AORD=0; UNR=8; PRIO=1; UP=5; VZ=1; SIGK=1; POLK=4; CHK=6
SPLIT=1
def stage1():
    waitfor('kv1'); e('ds_write_b128 v251, v[4:7]')
    for n in range(5): e(f'ds_write_b128 v245, {vr(STG+24+8*n,4)} offset:{1024*n}\nds_write_b128 v246, {vr(STG+28+8*n,4)} offset:{1088*n}')
def bepi():
    stamp('bepi0')
    nop(8); pack(120,92,True); pack(24,100,False); pack(28,108,False)
    e(f'''s_lshl_b32 {T}, s93, 10
    s_add_u32 {T}, {T}, {KB}
    buffer_store_dwordx4 v[24:27], v2, {WS}, {T} offen sc1
    s_mul_i32 {T}, s93, 1088
    s_add_u32 {T}, {T}, {VB}
    buffer_store_dwordx4 v[28:31], v248, {WS}, {T} offen sc1
    s_mov_b32 exec_lo, 0x00010001
    s_mov_b32 exec_hi, 0x00010001
    buffer_store_dwordx4 v[4:7], v249, {WS}, {T} offen offset:256 sc1
    s_mov_b64 exec, -1
    v_mov_b32 v{IDX}, 0xdddd
    v_mov_b32 v115, v250
    v_mov_b32 v20, v2''')
    issued('kb',3)
    if gen1.POLLCH==11: stage0(); e('s_waitcnt lgkmcnt(0)')
    e('s_barrier')
    stamp('stg')
def rowmax(dst,src,acc=False):
    r=list(range(src,src+16))
    if acc: e(f'v_max3_f32 v{dst}, v{dst}, v{r[0]}, v{r[1]}'); r=r[2:]
    else: e(f'v_max3_f32 v{dst}, v{r[0]}, v{r[1]}, v{r[2]}\nv_max_f32 v{dst}, v{dst}, v{r[3]}'); r=r[4:]
    for i in range(0,len(r),2): e(f'v_max3_f32 v{dst}, v{dst}, v{r[i]}, v{r[i+1]}')
def xhalf(dst,tmp):
    e(f'v_mov_b32 v{tmp}, v{dst}'); nop(2); e(f'v_permlane32_swap_b32 v{dst}, v{tmp}'); nop(1); e(f'v_max_f32 v{dst}, v{dst}, v{tmp}')
def ex(b,i0):
    for i in range(i0,i0+4): e(f'v_exp_f32 v{S[b]+i}, v{S[b]+i}')
def check(tag):
    e(f'''v_max3_f32 v1, |v{O}|, |v{O+1}|, |v{O+2}|
    v_max3_f32 v1, v1, |v{O+3}|, |v{O+4}|
    v_max3_f32 v1, v1, |v{O+5}|, |v{O+6}|
    v_add_f32 v2, v{O}, v{O+1}
    v_max_f32 v1, v1, |v{O+7}|''')
    for i in range(2,8): e(f'v_add_f32 v2, v2, v{O+i}')
    e(f'''v_cmp_nlt_f32 vcc, v{O+8}, v252
    v_cmp_nlt_f32 s[88:89], v1, v253
    s_or_b64 vcc, vcc, s[88:89]
    v_cmp_u_f32 s[88:89], v2, v2
    s_or_b64 vcc, vcc, s[88:89]
    s_cmp_eq_u32 {FLG}, 0
    s_cselect_b64 vcc, vcc, 0
    s_cmp_lg_u64 vcc, 0
    s_cbranch_scc1 L_fb{tag}''')
def onorm(dst):
    e(f'v_rcp_f32 v1, v{O+8}'); nop(1)
    for i in range(8): e(f'v_mul_f32 v{O+i}, v{O+i}, v1')
    for i in range(4): e(f'v_cvt_pk_bf16_f32 v{dst+i}, v{O+2*i}, v{O+2*i+1}')
def vread(o,t):
    if VZ: e('s_mov_b64 exec, s[68:69]')
    e(f'ds_read_b128 {vr(V0[o],4)}, v{VV} offset:{1088*t}\nds_read_b128 {vr(V1[o],4)}, v{VV} offset:{1088*t+544}')
    if VZ: e('s_mov_b64 exec, -1')
def tiles(n,X):
    per=-(-len(X)//n)
    for t in range(n):
        b=t&1;o=b^1; x=X[t*per:(t+1)*per]
        ex(b,0); e(f'{SM} {vr(O,16)}, {vr(V1[o],4)}, {vr(S[o]+8,8)}, v{IDX}')
        if x: e(x[0])
        ex(b,4); e(f's_waitcnt lgkmcnt(0)\n{QK} {vr(S[o],16)}, {vr(KF[o],4)}, {vr(QA,4)}, {vr(C,16)}')
        e(f'ds_read_b128 {vr(KF[b],4)}, v{VK} offset:{1024*(t+2)}')
        vread(o,t+1)
        ex(b,8); e(f'{SM} {vr(O,16)}, {vr(V0[b],4)}, {vr(S[b],8)}, v{IDX}')
        for y in x[1:]: e(y)
        if t==n-1: e(f'v_add_u32 v{VK}, {1024*n}, v{VK}\nv_add_u32 v{VV}, {1088*n}, v{VV}')
        ex(b,12)
def attnA():
    e(f'''v_add_u32 v{VK}, {KLB}, v20
    v_mov_b32 v252, 0x71800000
    v_mov_b32 v253, 0x7e800000
    s_mov_b32 {FLG}, 0
    s_mov_b32 s95, {(1<<2)|(1<<(UP-1))|(1<<UP)|(1<<7)|(1<<8)}
    ds_read_b128 {vr(KF[0],4)}, v{VK}
    s_waitcnt lgkmcnt(0)
    {QK} {vr(S[0],16)}, {vr(KF[0],4)}, {vr(QA,4)}, 0''')
    if VZ:
        e('s_mov_b32 s68, 0x11ffff\ns_mov_b32 s69, 0x11ffff')
        for r in range(96,112,2): e(f'v_mov_b64 {vr(r,2)}, 0')
    nop(4 if VZ else 8);nop(4); rowmax(1,S[0]); xhalf(1,2)
    e(f'v_add_f32 v1, 0x42800000, v1\nL_Arun:')
    for i in range(16): e(f'v_sub_f32 v{C+i}, 0, v1')
    e(f'''v_add_u32 v{VK}, {KLB}, v20
    v_mov_b32 v{VV}, v115
    ds_read_b128 {vr(KF[0],4)}, v{VK}
    ds_read_b128 {vr(KF[1],4)}, v{VK} offset:1024''')
    vread(0,0)
    for r in list(range(O,O+16,2))+list(range(S[1]+8,S[1]+16,2))+[V1[1],V1[1]+2]: e(f'v_mov_b64 {vr(r,2)}, 0')
    e(f's_waitcnt lgkmcnt(3)\n{QK} {vr(S[0],16)}, {vr(KF[0],4)}, {vr(QA,4)}, {vr(C,16)}\ns_mov_b32 {IT}, 0')
    nop(8);nop(4)
    if PRIO: e('s_setprio 3')
    e(f's_cmp_lg_u32 {FLG}, 0\ns_cbranch_scc1 L_Aloop')
    tiles(8,kvloads(1)); SIDEVM[:]=gen1.vm; e(f's_mov_b32 {IT}, 1')
    e('L_Aloop:')
    tiles(8,[])
    e(f'''s_add_u32 {IT}, {IT}, 1
    s_bitcmp1_b32 s95, {IT}
    s_cbranch_scc0 L_Aloop
    s_cmp_lg_u32 {IT}, 8
    s_cbranch_scc1 L_side''')
    nop(1)
    e(f'{SM} {vr(O,16)}, {vr(V1[1],4)}, {vr(S[1]+8,8)}, v{IDX}')
    e('s_waitcnt lgkmcnt(0)\ns_setprio 0')
    nop(8);nop(8);nop(2)
    check('A'); stamp('Aend'); onorm(88)
    e(f'''s_lshl_b32 {T}, {RBA}, 1
    s_and_b32 {T2}, {SW}, 1
    s_add_u32 {T}, {T}, {T2}
    s_lshl_b32 {T}, {T}, 3
    s_add_u32 {T}, {T}, {HG}
    s_lshl_b32 {T}, {T}, 2
    s_lshr_b32 {T2}, {SW}, 1
    s_add_u32 {T}, {T}, {T2}
    s_lshl_b32 {T}, {T}, 10
    s_add_u32 {T}, {T}, {OA}
    v_lshlrev_b32 v4, 4, v0
    buffer_store_dwordx4 v[88:91], v4, {WS}, {T} offen sc1''')
SIDEVM=[]
def side():
    gen1.vm[:]=SIDEVM
    e(f'L_side:\ns_cmp_lg_u32 {IT}, 2\ns_cbranch_scc1 L_side2')
    stage1()
    e(f's_waitcnt lgkmcnt(0)\ns_barrier\ns_cmp_lg_u32 {SW}, 7\ns_cbranch_scc1 L_Aloop')
    signal(f's_and_b32 {T}, s2, 7\ns_add_u32 {T}, {T}, 8')
    e(f'''s_branch L_Aloop
    L_side2:
    s_cmp_lg_u32 {IT}, 7
    s_cbranch_scc1 L_side3
    s_setprio 0
    s_branch L_Aloop
    L_side3:
    s_cmp_eq_u32 {IT}, {UP}
    s_cbranch_scc1 L_side4
    v_lshlrev_b32 v2, 8, v22
    v_add_u32 v2, 2048, v2
    buffer_load_dword v3, v2, {WS}, 0 offen sc1
    s_lshl_b32 {T}, {SW}, 16
    s_lshl_b32 {T2}, {HG}, 7
    s_add_u32 {T}, {T}, {T2}
    v_lshlrev_b32 v4, 10, v0
    buffer_load_dword v5, v4, {WOA}, {T} offen
    buffer_load_dword v6, v4, {WOB}, {T} offen
    s_sub_u32 {T}, s93, 8
    s_lshl_b32 {T2}, {T}, 10
    s_add_u32 s77, {T2}, {KB}
    s_add_u32 s78, s77, 4096
    s_add_u32 s79, s77, 8192
    s_mul_i32 {T2}, {T}, 1088
    s_add_u32 s80, {T2}, {VB}
    s_add_u32 s81, s80, 4352
    s_add_u32 s82, s80, 8704
    s_min_u32 {NT}, s91, 8
    s_branch L_Aloop
    L_side4:''')
    poll((2,WS),32,3,pre_issued=True)
    e('v_lshlrev_b32 v4, 4, v0')
    if PRIO: e('s_setprio 2')
    X=[]
    for k in range(9):
        q=8-k
        X.append(f'buffer_load_dwordx4 {vr(BK+4*k,4)}, v4, {WS}, s{77+q//4} offen offset:{(q&3)*1024}{LS()}')
        for h in range(2): X.append(f'buffer_load_dwordx4 {vr(BV+8*k+4*h,4)}, v115, {WS}, s{80+q//4} offen offset:{(q&3)*1088+544*h}{LS()}')
    tiles(16,X)
    if PRIO: e(f's_setprio {int(UP<5)}')
    e(f's_mov_b32 {IT}, {UP+2}\ns_branch L_Aloop')
def fbA():
    e(f'''L_fbA:
    s_mov_b32 {FLG}, 16
    s_mov_b32 s95, 256
    v_add_u32 v{VK}, {KLB}, v20
    v_mov_b32 v1, 0xff800000
    s_mov_b32 {IT}, 0
    L_fbAl:
    ds_read_b128 {vr(KF[0],4)}, v{VK}
    v_add_u32 v{VK}, 1024, v{VK}
    s_waitcnt lgkmcnt(0)
    {QK} {vr(S[0],16)}, {vr(KF[0],4)}, {vr(QA,4)}, 0''')
    nop(8);nop(4); rowmax(1,S[0],True)
    e(f's_add_u32 {IT}, {IT}, 1\ns_cmp_lt_u32 {IT}, 64\ns_cbranch_scc1 L_fbAl')
    xhalf(1,2); e('s_branch L_Arun')
def wodma(i):
    br,n=i>>3,i&7
    return f's_add_u32 m0, s94, {(0,69632)[br]+n*1024}\ns_mov_b32 {T}, {n*8192}\nbuffer_load_dwordx4 v5, {(WOA,WOB)[br]}, {T} offen lds'
OX=[]; DPT=2; BPK=5
def w7(f):
    lab[0]+=1; n=lab[0]; e(f's_cmp_lg_u32 {SW}, 7\ns_cbranch_scc1 L_w7x{n}'); f(); e(f'L_w7x{n}:')
def act(k0,k1,main=False):
    lab[0]+=1; n=lab[0]; e(f's_cmp_lg_u32 {FLG}, 0\ns_cbranch_scc1 L_ac{n}')
    for k in range(k0,k1):
        if k==SIGK:
            e(f's_waitcnt vmcnt({min(8,DPT*k)})')
            if main: stamp('Bsig',4)
            e('s_barrier'); w7(lambda: signal(f's_add_u32 {T}, {RBA}, 16'))
        for i in range(DPT*k,min(8,DPT*k+DPT)): e(wodma(i))
        if k==POLK: w7(lambda: pollissue(0))
        if k==CHK:
            if main: stamp('Bck',4)
            X=oload(0,main)
            for x in X[:4]: e(x)
            OX[:]=X[4:]
        if k==CHK+1:
            for x in OX: e(x)
        if main and k==BPK: e('s_setprio 0')
    e(f'L_ac{n}:')
def bexits():
    for k in range(8):
        e(f'L_Bx{k}:'); nop(2); e(f'{SM} {vr(O,16)}, {vr(BV+8*k+4,4)}, {vr(S[k&1]+8,8)}, v{IDX}')
        act(k+1,9); e('s_branch L_Bdone')
def pollissue(br):
    e(f's_add_u32 {T}, {(RBA,RBB)[br]}, {(16,48)[br]}\ns_lshl_b32 {T}, {T}, 8\nv_mov_b32 v2, {T}\nbuffer_load_dword v3, v2, {WS}, 0 offen sc1')
FR=[[88,92,96,100,104,108,116,124],list(range(160,192,4))]
def attnB():
    e(f'''v_and_b32 v1, 31, v0
    v_lshrrev_b32 v2, 5, v0
    v_lshlrev_b32 v2, 2, v2
    v_sub_u32 v1, v1, v2
    v_cvt_f32_i32 v1, v1
    v_mov_b32 v2, 0x5d800000
    s_mov_b32 {FLG}, 0''')
    import struct
    for r in range(16):
        jr=8*(r>>2)+(r&3); k=struct.unpack('<I',struct.pack('<f',(0.5-jr)*2.0**60))[0]
        e(f'v_fmaak_f32 v{TP+r}, v1, v2, {hex(k)}')
    for r in range(16): e(f'v_min_f32 v{S[0]+r}, 0, v{TP+r}')
    e(f's_waitcnt vmcnt(1)\n{QK} {vr(S[0],16)}, {vr(BK,4)}, {vr(QB,4)}, {vr(S[0],16)}')
    e(f'''v_and_b32 v1, 1, v23
    v_lshlrev_b32 v1, 2, v1
    v_xor_b32 v1, v1, v22
    v_lshlrev_b32 v1, 4, v1
    v_lshl_add_u32 v5, v21, 10, v1
    s_lshl_b32 {T}, {SW}, 16
    s_lshl_b32 {T2}, {HG}, 7
    s_add_u32 {T}, {T}, {T2}
    v_add_u32 v5, {T}, v5
    s_lshl_b32 s94, {SW}, 13''')
    nop(4); rowmax(1,S[0]); xhalf(1,2)
    e('v_add_f32 v6, 0x42800000, v1\ns_barrier\ns_setprio 1')
    stamp('Bbar')
    e('L_Brun:\nv_sub_f32 v6, 0, v6\nv_mov_b32 v7, v6')
    for r in range(0,16,2): e(f'v_pk_add_f32 {vr(S[0]+r,2)}, {vr(S[0]+r,2)}, v[6:7]')
    for r in range(O,O+16,2): e(f'v_mov_b64 {vr(r,2)}, 0')
    for r in range(0,16,2): e(f'v_mov_b64 {vr(C+r,2)}, v[6:7]')
    for k in range(9):
        b=k&1;o=b^1
        ex(b,0)
        if k>0: e(f'{SM} {vr(O,16)}, {vr(BV+8*(k-1)+4,4)}, {vr(S[o]+8,8)}, v{IDX}')
        ex(b,4)
        if k==6: pass
        if k<8: e(f'{QK} {vr(S[o],16)}, {vr(BK+4*(k+1),4)}, {vr(QB,4)}, {vr(C,16)}')
        ex(b,8)
        e(f'{SM} {vr(O,16)}, {vr(BV+8*k,4)}, {vr(S[b],8)}, v{IDX}')
        ex(b,12)
        if k==6:
            for r in range(16): e(f'v_min_f32 v{C+r}, -v{TP+r}, v6')
        act(k,k+1,True)
        if k<8: e(f's_cmp_eq_u32 {NT}, {k}\ns_cbranch_scc1 L_Bx{k}\ns_nop 1')
    nop(2); e(f'{SM} {vr(O,16)}, {vr(BV+8*8+4,4)}, {vr(S[0]+8,8)}, v{IDX}')
    e('L_Bdone:\ns_setprio 0'); tailaddr(); nop(2)
    check('B'); stamp('Bend'); onorm(72)
    e(f'''s_lshl_b32 {T}, s91, 5
    s_add_u32 {T}, {T}, s92
    s_lshl_b32 {T}, {T}, 10
    s_add_u32 {T}, {T}, {OB}
    buffer_store_dwordx4 v[72:75], v4, {WS}, {T} offen sc1''')
def fbB():
    e(f'L_fbB:\ns_mov_b32 {FLG}, 16\nv_mov_b32 v1, 0xff800000')
    for k in range(9):
        if k in (0,8):
            for r in range(16): e(f'v_min_f32 v{S[0]+r}, 0, {"-" if k else ""}v{TP+r}' if k==0 else f'v_min_f32_e64 v{S[0]+r}, -v{TP+r}, 0')
            nop(2)
        e(f'{QK} {vr(S[0],16)}, {vr(BK+4*k,4)}, {vr(QB,4)}, {vr(S[0],16) if k in (0,8) else 0}')
        nop(8);nop(4); rowmax(1,S[0],True)
        if k<8: e(f's_cmp_eq_u32 {NT}, {k}\ns_cbranch_scc1 L_fbBd')
    e('L_fbBd:'); xhalf(1,2); e('v_mov_b32 v6, v1')
    for r in range(16): e(f'v_min_f32 v{S[0]+r}, 0, v{TP+r}')
    nop(2); e(f'{QK} {vr(S[0],16)}, {vr(BK,4)}, {vr(QB,4)}, {vr(S[0],16)}'); nop(8); nop(4); e('s_branch L_Brun')
def oload(br,main=True):
    base,rb,tgt=((OA,RBA,8),(OB,RBO,16))[br]
    w7(lambda: poll((2,WS),tgt,3,pre_issued=True)); e('s_waitcnt vmcnt(0)\ns_barrier')
    if main: stamp('pol',4)
    e(f'''s_lshl_b32 {T}, {rb}, 1
    s_and_b32 {T2}, {SW}, 1
    s_add_u32 {T}, {T}, {T2}
    s_lshl_b32 {T}, {T}, 2
    s_lshr_b32 {T2}, {SW}, 1
    s_add_u32 {T}, {T}, {T2}
    s_lshl_b32 {T}, {T}, 13
    s_add_u32 s77, {T}, {base}
    s_add_u32 s78, s77, 4096''')
    return [f'buffer_load_dwordx4 {vr(FR[br][n],4)}, v4, {WS}, s{77+n//4} offen offset:{(n&3)*1024}{LS()}' for n in range(8)]
OSC=0; OSCA=0
def oproj(br):
    a=(7,8) if br==0 else (9,10)
    def rd(n):
        for ct in range(2):
            for h in range(2): e(f'ds_read_b64_tr_b16 {vr(56+8*(n&1)+4*ct+2*h,2)}, v{a[ct]} offset:{2048*n+1024*h}')
    rd(0)
    for n in range(8):
        if n<7: rd(n+1)
        e(f's_waitcnt vmcnt({8 if br==0 else 8-n}) lgkmcnt({4 if n<7 else 0})')
        for ct in range(2): e(f'{QK} {vr(24+16*ct,16)}, {vr(56+8*(n&1)+4*ct,4)}, {vr(FR[br][n],4)}, {vr(24+16*ct,16) if n else 0}')
        if br==0: e(wodma(8+n))
    if br==0:
        stamp('mA',4); e('s_waitcnt vmcnt(8)\ns_barrier'); w7(lambda: (signal(f's_add_u32 {T}, {RBB}, 48'),pollissue(1)))
    nop(8); nop(4)
    for r in range(1,4):
        for h in range(2): e(f'ds_write_b128 v{10+r}, {vr(24+8*r+4*h,4)} offset:{1024*h}')
    e('s_waitcnt lgkmcnt(0)')
    X=oload(1) if br==0 else []
    if br: e('s_barrier'); stamp('part',4)
    for r in range(3):
        for h in range(2): e(f'ds_read_b128 {vr(192+8*r+4*h,4)}, v14 offset:{2048*r+1024*h}')
    for x in X: e(x)
    if br==0: stamp('oBld')
    for r in range(3):
        e(f's_waitcnt lgkmcnt({4-2*r})')
        for i in range(0,8,2): e(f'v_pk_add_f32 {vr(24+i,2)}, {vr(24+i,2)}, {vr(192+8*r+i,2)}')
    p=224+4*br
    for i in range(4): e(f'v_cvt_pk_bf16_f32 v{p+i}, v{24+2*i}, v{24+2*i+1}')
    nop(2); e(f'v_permlane32_swap_b32 v{p}, v{p+2}\nv_permlane32_swap_b32 v{p+1}, v{p+3}')
    if br==0: stamp('oA')
    e(f'''s_lshl_b32 {T}, {(RBA,RBO)[br]}, 17
    s_add_u32 {T}, {T}, {br*1024}
    buffer_store_dwordx4 {vr(p,4)}, v15, {OUT}, {T} offen{['',' sc1',' sc0 sc1',' nt'][(OSCA,OSC)[br]]}''')
def tailaddr():
    e(f'''v_bfe_u32 v1, v0, 2, 2
    v_lshrrev_b32 v2, 5, v0
    v_lshl_add_u32 v3, v2, 2, v1
    v_lshlrev_b32 v3, 7, v3
    v_lshrrev_b32 v1, 1, v1
    v_lshl_add_u32 v3, v1, 6, v3
    v_and_b32 v1, 1, v23
    v_lshl_add_u32 v3, v1, 5, v3
    v_and_b32 v1, 3, v0
    v_lshl_add_u32 v3, v1, 3, v3
    s_lshr_b32 {T}, {SW}, 1
    s_mul_i32 {T2}, {T}, {16384+32}
    v_xor_b32 v7, {T2}, v3
    v_xor_b32 v8, 64, v7
    v_add_u32 v9, 69632, v7
    v_add_u32 v10, 69632, v8
    s_lshl_b32 {T}, {T}, 5
    s_lshl_b32 {T2}, {HG}, 7
    s_add_u32 {T}, {T}, {T2}
    s_and_b32 {T2}, {SW}, 1
    s_lshl_b32 {T2}, {T2}, 16
    s_add_u32 {T}, {T}, {T2}
    v_and_b32 v1, 31, v0
    v_lshlrev_b32 v1, 11, v1
    v_lshl_add_u32 v1, v2, 4, v1
    v_add_u32 v15, {T}, v1
    s_mul_i32 {T}, {SW}, 6144
    v_add_u32 v14, {T}, v4''')
    for r in range(1,4): e(f's_xor_b32 {T}, {SW}, {2*r}\ns_mul_i32 {T}, {T}, 6144\ns_add_u32 {T}, {T}, {2048*(r-1)}\nv_add_u32 v{10+r}, {T}, v4')
def tail():
    stamp('oAld'); oproj(0); oproj(1)
def build():
    e(f'; @launch grid=(256,1,1) block=(512,1,1) lds=163840')
    L[0]=L[0].strip()
    e(f'.amdgcn_target "amdgcn-amd-amdhsa--gfx950"\n.text\n.globl {NAME}_kernel\n.p2align 8\n.type {NAME}_kernel,@function\n{NAME}_kernel:')
    prologue(); projections(); bepi(); attnA(); attnB(); tail()
    if gen1.PROF:
        e('s_waitcnt vmcnt(0)'); stamp('end')
        e(f's_lshl_b32 {T}, s2, 3\ns_add_u32 {T}, {T}, {SW}\ns_lshl_b32 {T}, {T}, 8\ns_add_u32 {T}, {T}, {PRF}\nv_lshlrev_b32 v1, 2, v0\nbuffer_store_dword v255, v1, {WS}, {T} offen')
    e('L_end:\ns_endpgm')
    side(); bexits(); fbA(); fbB()
    e(f'''.section .rodata,"a"
    .p2align 6
    .amdhsa_kernel {NAME}_kernel
    .amdhsa_next_free_vgpr 256
    .amdhsa_next_free_sgpr 102
    .amdhsa_accum_offset 256
    .amdhsa_group_segment_fixed_size 0
    .amdhsa_kernarg_size 88
    .amdhsa_user_sgpr_count 2
    .amdhsa_user_sgpr_kernarg_segment_ptr 1
    .amdhsa_system_sgpr_workgroup_id_x 1
    .end_amdhsa_kernel''')
    return '\n'.join(L)+'\n'
if __name__=='__main__':
    for a in sys.argv[2:]:
        k,v=a.split('='); setattr(gen1,k,int(v)); globals()[k]=int(v)
    open(sys.argv[1],'w').write(build())
```

```python
from gen1 import *
import gen1
QK='v_mfma_f32_32x32x16_bf16'; SM='v_smfmac_f32_32x32x32_bf16'
S=[24,40]; C=56; O=72; KF=[88,92]; V0=[96,100]; V1=[104,108]; IDX=112; VK=113; VV=114; QA=116; QB=120
BK=128; BV=164; TP=236; AORD=0; UNR=8; PRIO=1; UP=5; VZ=1; SIGK=1; POLK=4; CHK=6
SPLIT=1
def stage1():
    waitfor('kv1'); e('ds_write_b128 v251, v[4:7]')
    for n in range(5): e(f'ds_write_b128 v245, {vr(STG+24+8*n,4)} offset:{1024*n}\nds_write_b128 v246, {vr(STG+28+8*n,4)} offset:{1088*n}')
def bepi():
    stamp('bepi0')
    nop(8); pack(120,92,True); pack(24,100,False); pack(28,108,False)
    e(f'''s_lshl_b32 {T}, s93, 10
    s_add_u32 {T}, {T}, {KB}
    buffer_store_dwordx4 v[24:27], v2, {WS}, {T} offen sc1
    s_mul_i32 {T}, s93, 1088
    s_add_u32 {T}, {T}, {VB}
    buffer_store_dwordx4 v[28:31], v248, {WS}, {T} offen sc1
    s_mov_b32 exec_lo, 0x00010001
    s_mov_b32 exec_hi, 0x00010001
    buffer_store_dwordx4 v[4:7], v249, {WS}, {T} offen offset:256 sc1
    s_mov_b64 exec, -1
    v_mov_b32 v{IDX}, 0xdddd
    v_mov_b32 v115, v250
    v_mov_b32 v20, v2''')
    issued('kb',3)
    if gen1.POLLCH==11: stage0(); e('s_waitcnt lgkmcnt(0)')
    e('s_barrier')
    stamp('stg')
def rowmax(dst,src,acc=False):
    r=list(range(src,src+16))
    if acc: e(f'v_max3_f32 v{dst}, v{dst}, v{r[0]}, v{r[1]}'); r=r[2:]
    else: e(f'v_max3_f32 v{dst}, v{r[0]}, v{r[1]}, v{r[2]}\nv_max_f32 v{dst}, v{dst}, v{r[3]}'); r=r[4:]
    for i in range(0,len(r),2): e(f'v_max3_f32 v{dst}, v{dst}, v{r[i]}, v{r[i+1]}')
def xhalf(dst,tmp):
    e(f'v_mov_b32 v{tmp}, v{dst}'); nop(2); e(f'v_permlane32_swap_b32 v{dst}, v{tmp}'); nop(1); e(f'v_max_f32 v{dst}, v{dst}, v{tmp}')
def ex(b,i0):
    for i in range(i0,i0+4): e(f'v_exp_f32 v{S[b]+i}, v{S[b]+i}')
def check(tag):
    e(f'''v_max3_f32 v1, |v{O}|, |v{O+1}|, |v{O+2}|
    v_max3_f32 v1, v1, |v{O+3}|, |v{O+4}|
    v_max3_f32 v1, v1, |v{O+5}|, |v{O+6}|
    v_add_f32 v2, v{O}, v{O+1}
    v_max_f32 v1, v1, |v{O+7}|''')
    for i in range(2,8): e(f'v_add_f32 v2, v2, v{O+i}')
    e(f'''v_cmp_nlt_f32 vcc, v{O+8}, v252
    v_cmp_nlt_f32 s[88:89], v1, v253
    s_or_b64 vcc, vcc, s[88:89]
    v_cmp_u_f32 s[88:89], v2, v2
    s_or_b64 vcc, vcc, s[88:89]
    s_cmp_eq_u32 {FLG}, 0
    s_cselect_b64 vcc, vcc, 0
    s_cmp_lg_u64 vcc, 0
    s_cbranch_scc1 L_fb{tag}''')
def onorm(dst):
    e(f'v_rcp_f32 v1, v{O+8}'); nop(1)
    for i in range(8): e(f'v_mul_f32 v{O+i}, v{O+i}, v1')
    for i in range(4): e(f'v_cvt_pk_bf16_f32 v{dst+i}, v{O+2*i}, v{O+2*i+1}')
def vread(o,t):
    if VZ: e('s_mov_b64 exec, s[68:69]')
    e(f'ds_read_b128 {vr(V0[o],4)}, v{VV} offset:{1088*t}\nds_read_b128 {vr(V1[o],4)}, v{VV} offset:{1088*t+544}')
    if VZ: e('s_mov_b64 exec, -1')
def tiles(n,X):
    per=-(-len(X)//n)
    for t in range(n):
        b=t&1;o=b^1; x=X[t*per:(t+1)*per]
        ex(b,0); e(f'{SM} {vr(O,16)}, {vr(V1[o],4)}, {vr(S[o]+8,8)}, v{IDX}')
        if x: e(x[0])
        ex(b,4); e(f's_waitcnt lgkmcnt(0)\n{QK} {vr(S[o],16)}, {vr(KF[o],4)}, {vr(QA,4)}, {vr(C,16)}')
        e(f'ds_read_b128 {vr(KF[b],4)}, v{VK} offset:{1024*(t+2)}')
        vread(o,t+1)
        ex(b,8); e(f'{SM} {vr(O,16)}, {vr(V0[b],4)}, {vr(S[b],8)}, v{IDX}')
        for y in x[1:]: e(y)
        if t==n-1: e(f'v_add_u32 v{VK}, {1024*n}, v{VK}\nv_add_u32 v{VV}, {1088*n}, v{VV}')
        ex(b,12)
def attnA():
    e(f'''v_add_u32 v{VK}, {KLB}, v20
    v_mov_b32 v252, 0x71800000
    v_mov_b32 v253, 0x7e800000
    s_mov_b32 {FLG}, 0
    s_mov_b32 s95, {(1<<2)|(1<<(UP-1))|(1<<UP)|(1<<7)|(1<<8)}
    ds_read_b128 {vr(KF[0],4)}, v{VK}
    s_waitcnt lgkmcnt(0)
    {QK} {vr(S[0],16)}, {vr(KF[0],4)}, {vr(QA,4)}, 0''')
    if VZ:
        e('s_mov_b32 s68, 0x11ffff\ns_mov_b32 s69, 0x11ffff')
        for r in range(96,112,2): e(f'v_mov_b64 {vr(r,2)}, 0')
    nop(4 if VZ else 8);nop(4); rowmax(1,S[0]); xhalf(1,2)
    e(f'v_add_f32 v1, 0x42800000, v1\nL_Arun:')
    for i in range(16): e(f'v_sub_f32 v{C+i}, 0, v1')
    e(f'''v_add_u32 v{VK}, {KLB}, v20
    v_mov_b32 v{VV}, v115
    ds_read_b128 {vr(KF[0],4)}, v{VK}
    ds_read_b128 {vr(KF[1],4)}, v{VK} offset:1024''')
    vread(0,0)
    for r in list(range(O,O+16,2))+list(range(S[1]+8,S[1]+16,2))+[V1[1],V1[1]+2]: e(f'v_mov_b64 {vr(r,2)}, 0')
    e(f's_waitcnt lgkmcnt(3)\n{QK} {vr(S[0],16)}, {vr(KF[0],4)}, {vr(QA,4)}, {vr(C,16)}\ns_mov_b32 {IT}, 0')
    nop(8);nop(4)
    if PRIO: e('s_setprio 3')
    e(f's_cmp_lg_u32 {FLG}, 0\ns_cbranch_scc1 L_Aloop')
    Y=([sentinel()] if DP else [])+([oaaddr()+'\n'+sst()] if DPA else []); tiles(8,Y+kvloads(1) if SF else kvloads(1)+Y); SIDEVM[:]=gen1.vm; e(f's_mov_b32 {IT}, 1')
    e('L_Aloop:')
    tiles(8,[])
    e(f'''s_add_u32 {IT}, {IT}, 1
    s_bitcmp1_b32 s95, {IT}
    s_cbranch_scc0 L_Aloop
    s_cmp_lg_u32 {IT}, 8
    s_cbranch_scc1 L_side''')
    nop(1)
    e(f'{SM} {vr(O,16)}, {vr(V1[1],4)}, {vr(S[1]+8,8)}, v{IDX}')
    e('s_waitcnt lgkmcnt(0)\ns_setprio 0')
    nop(8);nop(8);nop(2)
    check('A'); stamp('Aend'); onorm(88)
    if DPA:
        for i in range(4): e(f'v_min_u32 v{88+i}, -2, v{88+i}')
    e(oaaddr())
    e(f'''v_lshlrev_b32 v4, 4, v0
    buffer_store_dwordx4 v[88:91], v4, {WS}, {T} offen sc1''')
SIDEVM=[]
def oaaddr():
    return f'''s_lshl_b32 {T}, {RBA}, 1
    s_and_b32 {T2}, {SW}, 1
    s_add_u32 {T}, {T}, {T2}
    s_lshl_b32 {T}, {T}, 3
    s_add_u32 {T}, {T}, {HG}
    s_lshl_b32 {T}, {T}, 2
    s_lshr_b32 {T2}, {SW}, 1
    s_add_u32 {T}, {T}, {T2}
    s_lshl_b32 {T}, {T}, 10
    s_add_u32 {T}, {T}, {OA}'''
DP=1; RALL=2; OE_A=3; OE_B=5; SB=0; DPA=1; BARL=1; SF=0
def sst(): return f'buffer_store_dwordx2 v[240:241], v242, {WS}, {T} offen{SS()}\nbuffer_store_dwordx2 v[240:241], v242, {WS}, {T} offen offset:512{SS()}'
def SS(): return ' sc1'
def sentinel():
    return f's_lshl_b32 {T}, s91, 5\ns_add_u32 {T}, {T}, s92\ns_lshl_b32 {T}, {T}, 10\ns_add_u32 {T}, {T}, {OB}\nv_mov_b64 v[240:241], -1\nv_lshrrev_b32 v242, 1, v20\n'+sst()
def side():
    gen1.vm[:]=SIDEVM
    e(f'L_side:\ns_cmp_lg_u32 {IT}, 2\ns_cbranch_scc1 L_side2')
    stage1()
    e(f's_waitcnt lgkmcnt(0)\ns_barrier\ns_cmp_lg_u32 {SW}, 7\ns_cbranch_scc1 L_Aloop')
    signal(f's_and_b32 {T}, s2, 7\ns_add_u32 {T}, {T}, 8')
    e(f'''s_branch L_Aloop
    L_side2:
    s_cmp_lg_u32 {IT}, 7
    s_cbranch_scc1 L_side3
    s_setprio 0
    s_branch L_Aloop
    L_side3:
    s_cmp_eq_u32 {IT}, {UP}
    s_cbranch_scc1 L_side4
    v_lshlrev_b32 v2, 8, v22
    v_add_u32 v2, 2048, v2
    buffer_load_dword v3, v2, {WS}, 0 offen sc1
    s_lshl_b32 {T}, {SW}, 16
    s_lshl_b32 {T2}, {HG}, 7
    s_add_u32 {T}, {T}, {T2}
    v_lshlrev_b32 v4, 10, v0
    buffer_load_dword v5, v4, {WOA}, {T} offen
    buffer_load_dword v6, v4, {WOB}, {T} offen
    s_sub_u32 {T}, s93, 8
    s_lshl_b32 {T2}, {T}, 10
    s_add_u32 s77, {T2}, {KB}
    s_add_u32 s78, s77, 4096
    s_add_u32 s79, s77, 8192
    s_mul_i32 {T2}, {T}, 1088
    s_add_u32 s80, {T2}, {VB}
    s_add_u32 s81, s80, 4352
    s_add_u32 s82, s80, 8704
    s_min_u32 {NT}, s91, 8
    s_branch L_Aloop
    L_side4:''')
    poll((2,WS),32,3,pre_issued=True)
    e('v_lshlrev_b32 v4, 4, v0')
    if PRIO: e('s_setprio 2')
    X=[]
    for k in range(9):
        q=8-k
        X.append(f'buffer_load_dwordx4 {vr(BK+4*k,4)}, v4, {WS}, s{77+q//4} offen offset:{(q&3)*1024}{LS()}')
        for h in range(2): X.append(f'buffer_load_dwordx4 {vr(BV+8*k+4*h,4)}, v115, {WS}, s{80+q//4} offen offset:{(q&3)*1088+544*h}{LS()}')
    tiles(16,X)
    if PRIO: e(f's_setprio {int(UP<5)}')
    e(f's_mov_b32 {IT}, {UP+2}\ns_branch L_Aloop')
def fbA():
    e(f'''L_fbA:
    s_mov_b32 {FLG}, 16
    s_mov_b32 s95, 256
    v_add_u32 v{VK}, {KLB}, v20
    v_mov_b32 v1, 0xff800000
    s_mov_b32 {IT}, 0
    L_fbAl:
    ds_read_b128 {vr(KF[0],4)}, v{VK}
    v_add_u32 v{VK}, 1024, v{VK}
    s_waitcnt lgkmcnt(0)
    {QK} {vr(S[0],16)}, {vr(KF[0],4)}, {vr(QA,4)}, 0''')
    nop(8);nop(4); rowmax(1,S[0],True)
    e(f's_add_u32 {IT}, {IT}, 1\ns_cmp_lt_u32 {IT}, 64\ns_cbranch_scc1 L_fbAl')
    xhalf(1,2); e('s_branch L_Arun')
def wodma(i):
    br,n=i>>3,i&7
    return f's_add_u32 m0, s94, {(0,69632)[br]+n*1024}\ns_mov_b32 {T}, {n*8192}\nbuffer_load_dwordx4 v5, {(WOA,WOB)[br]}, {T} offen lds'
OAX=[]; OX=[]; DPT=2; BPK=5; ND=12; OE2=0
def w7(f):
    lab[0]+=1; n=lab[0]; e(f's_cmp_lg_u32 {SW}, 7\ns_cbranch_scc1 L_w7x{n}'); f(); e(f'L_w7x{n}:')
def act(k0,k1,main=False):
    lab[0]+=1; n=lab[0]; e(f's_cmp_lg_u32 {FLG}, 0\ns_cbranch_scc1 L_ac{n}')
    for k in range(k0,k1):
        if k==SIGK and not DPA:
            e(f's_waitcnt vmcnt({min(ND,DPT*k)})')
            if main: stamp('Bsig',4)
            e('s_barrier'); w7(lambda: signal(f's_add_u32 {T}, {RBA}, 16'))
        for i in range(DPT*k,min(ND,DPT*k+DPT)): e(wodma(i))
        if k==POLK and not DPA: w7(lambda: pollissue(0))
        if k==CHK:
            if main: stamp('Bck',4)
            X=oload(0,main); OAX[:]=X
            for x in X[:4]: e(x)
            OX[:]=X[4:]
        if k==CHK+1:
            for x in OX: e(x)
        if main and k==BPK: e('s_setprio 0')
    e(f'L_ac{n}:')
def bexits():
    for k in range(8):
        e(f'L_Bx{k}:'); nop(2); e(f'{SM} {vr(O,16)}, {vr(BV+8*k+4,4)}, {vr(S[k&1]+8,8)}, v{IDX}')
        act(k+1,9); e('s_branch L_Bdone')
def pollissue(br):
    e(f's_add_u32 {T}, {(RBA,RBB)[br]}, {(16,48)[br]}\ns_lshl_b32 {T}, {T}, 8\nv_mov_b32 v2, {T}\nbuffer_load_dword v3, v2, {WS}, 0 offen sc1')
FR=[[88,92,96,100,104,108,116,124],list(range(160,192,4))]
def attnB():
    e(f'''v_and_b32 v1, 31, v0
    v_lshrrev_b32 v2, 5, v0
    v_lshlrev_b32 v2, 2, v2
    v_sub_u32 v1, v1, v2
    v_cvt_f32_i32 v1, v1
    v_mov_b32 v2, 0x5d800000
    s_mov_b32 {FLG}, 0''')
    import struct
    for r in range(16):
        jr=8*(r>>2)+(r&3); k=struct.unpack('<I',struct.pack('<f',(0.5-jr)*2.0**60))[0]
        e(f'v_fmaak_f32 v{TP+r}, v1, v2, {hex(k)}')
    for r in range(16): e(f'v_min_f32 v{S[0]+r}, 0, v{TP+r}')
    e(f's_waitcnt vmcnt(1)\n{QK} {vr(S[0],16)}, {vr(BK,4)}, {vr(QB,4)}, {vr(S[0],16)}')
    e(f'''v_and_b32 v1, 1, v23
    v_lshlrev_b32 v1, 2, v1
    v_xor_b32 v1, v1, v22
    v_lshlrev_b32 v1, 4, v1
    v_lshl_add_u32 v5, v21, 10, v1
    s_lshl_b32 {T}, {SW}, 16
    s_lshl_b32 {T2}, {HG}, 7
    s_add_u32 {T}, {T}, {T2}
    v_add_u32 v5, {T}, v5
    s_lshl_b32 s94, {SW}, 13''')
    nop(4); rowmax(1,S[0]); xhalf(1,2)
    e('v_add_f32 v6, 0x42800000, v1\ns_barrier\ns_setprio 1')
    stamp('Bbar')
    e('L_Brun:\nv_sub_f32 v6, 0, v6\nv_mov_b32 v7, v6')
    for r in range(0,16,2): e(f'v_pk_add_f32 {vr(S[0]+r,2)}, {vr(S[0]+r,2)}, v[6:7]')
    for r in range(O,O+16,2): e(f'v_mov_b64 {vr(r,2)}, 0')
    for r in range(0,16,2): e(f'v_mov_b64 {vr(C+r,2)}, v[6:7]')
    for k in range(9):
        b=k&1;o=b^1
        ex(b,0)
        if k>0: e(f'{SM} {vr(O,16)}, {vr(BV+8*(k-1)+4,4)}, {vr(S[o]+8,8)}, v{IDX}')
        ex(b,4)
        if k==6: pass
        if k<8: e(f'{QK} {vr(S[o],16)}, {vr(BK+4*(k+1),4)}, {vr(QB,4)}, {vr(C,16)}')
        ex(b,8)
        e(f'{SM} {vr(O,16)}, {vr(BV+8*k,4)}, {vr(S[b],8)}, v{IDX}')
        ex(b,12)
        if k==6:
            for r in range(16): e(f'v_min_f32 v{C+r}, -v{TP+r}, v6')
        act(k,k+1,True)
        if k<8: e(f's_cmp_eq_u32 {NT}, {k}\ns_cbranch_scc1 L_Bx{k}\ns_nop 1')
    nop(2); e(f'{SM} {vr(O,16)}, {vr(BV+8*8+4,4)}, {vr(S[0]+8,8)}, v{IDX}')
    e('L_Bdone:\ns_setprio 0'); tailaddr(); nop(2)
    check('B'); stamp('Bend'); onorm(72)
    if DP:
        for i in range(4): e(f'v_min_u32 v{72+i}, -2, v{72+i}')
    e(f'''s_lshl_b32 {T}, s91, 5
    s_add_u32 {T}, {T}, s92
    s_lshl_b32 {T}, {T}, 10
    s_add_u32 {T}, {T}, {OB}
    buffer_store_dwordx4 v[72:75], v4, {WS}, {T} offen sc1''')
def fbB():
    e(f'L_fbB:\ns_mov_b32 {FLG}, 16\nv_mov_b32 v1, 0xff800000')
    for k in range(9):
        if k in (0,8):
            for r in range(16): e(f'v_min_f32 v{S[0]+r}, 0, {"-" if k else ""}v{TP+r}' if k==0 else f'v_min_f32_e64 v{S[0]+r}, -v{TP+r}, 0')
            nop(2)
        e(f'{QK} {vr(S[0],16)}, {vr(BK+4*k,4)}, {vr(QB,4)}, {vr(S[0],16) if k in (0,8) else 0}')
        nop(8);nop(4); rowmax(1,S[0],True)
        if k<8: e(f's_cmp_eq_u32 {NT}, {k}\ns_cbranch_scc1 L_fbBd')
    e('L_fbBd:'); xhalf(1,2); e('v_mov_b32 v6, v1')
    for r in range(16): e(f'v_min_f32 v{S[0]+r}, 0, v{TP+r}')
    nop(2); e(f'{QK} {vr(S[0],16)}, {vr(BK,4)}, {vr(QB,4)}, {vr(S[0],16)}'); nop(8); nop(4); e('s_branch L_Brun')
def oload(br,main=True):
    base,rb,tgt=((OA,RBA,8),(OB,RBO,16))[br]
    if br==0 and DPA:
        if not BARL: e('s_waitcnt vmcnt(0)\ns_barrier')
    elif not(DP and br):
        w7(lambda: poll((2,WS),tgt,3,pre_issued=True)); e('s_waitcnt vmcnt(0)\ns_barrier')
        if main: stamp('pol',4)
    e(f'''s_lshl_b32 {T}, {rb}, 1
    s_and_b32 {T2}, {SW}, 1
    s_add_u32 {T}, {T}, {T2}
    s_lshl_b32 {T}, {T}, 2
    s_lshr_b32 {T2}, {SW}, 1
    s_add_u32 {T}, {T}, {T2}
    s_lshl_b32 {T}, {T}, 13
    s_add_u32 s77, {T}, {base}
    s_add_u32 s78, s77, 4096''')
    return [f'buffer_load_dwordx4 {vr(FR[br][n],4)}, v4, {WS}, s{77+n//4} offen offset:{(n&3)*1024}{LS()}' for n in range(8)]
OSC=0; OSCA=3
def oproj(br):
    a=(7,8) if br==0 else (9,10)
    def rd(n):
        for ct in range(2):
            for h in range(2): e(f'ds_read_b64_tr_b16 {vr(56+8*(n&1)+4*ct+2*h,2)}, v{a[ct]} offset:{2048*n+1024*h}')
    if br==0 and DPA: e(('s_waitcnt vmcnt(9)\ns_barrier\n' if BARL else '')+f's_mov_b32 {SPIN}, 0x40000')
    if br==0 and OE2: assert ND==16 and DP; OBX[:]=oload(1)
    if br and DP and SB: e('s_waitcnt vmcnt(9)\ns_barrier'); stamp('wB',4)
    rd(0)
    for n in range(8):
        if n<7: rd(n+1)
        e(f's_waitcnt vmcnt({8-n+(0 if br else n if OE2 else min(n,16-ND))}) lgkmcnt({4 if n<7 else 0})')
        if DPA and br==0:
            f=FR[0][n]; e(f'v_max3_u32 v1, v{f}, v{f+1}, v{f+2}\nv_max_u32 v1, v1, v{f+3}\nv_cmp_eq_u32 vcc, -1, v1\ns_cbranch_vccnz L_ar{n}\nL_ag{n}:')
        if DP and br:
            f=FR[1][n]; e(f'L_oc{n}:\nv_max3_u32 v1, v{f}, v{f+1}, v{f+2}\nv_max_u32 v1, v1, v{f+3}\nv_cmp_eq_u32 vcc, -1, v1\ns_cbranch_vccnz L_or{n}\nL_og{n}:')
        for ct in range(2): e(f'{QK} {vr(24+16*ct,16)}, {vr(56+8*(n&1)+4*ct,4)}, {vr(FR[br][n],4)}, {vr(24+16*ct,16) if n else 0}')
        if br==0 and OE2: e(OBX[n])
        elif br==0 and ND+n<16: e(wodma(ND+n))
    if br==0:
        stamp('mA',4)
        if DP:
            e(f's_barrier\ns_mov_b32 {SPIN}, 0x40000')
            if not OE2: OBX[:]=oload(1)
            if not OE2:
                for x in OBX[:OE_A]: e(x)
        else: e('s_waitcnt vmcnt(8)\ns_barrier'); w7(lambda: (signal(f's_add_u32 {T}, {RBB}, 48'),pollissue(1)))
    nop(8); nop(4)
    for r in range(1,4):
        for h in range(2): e(f'ds_write_b128 v{10+r}, {vr(24+8*r+4*h,4)} offset:{1024*h}')
    if br==0 and DP and not OE2:
        for x in OBX[OE_A:OE_B]: e(x)
    e('s_waitcnt lgkmcnt(0)')
    X=oload(1) if br==0 and not DP else []
    if br==0 and DP:
        e('s_barrier' if SB or ND==16 else f's_waitcnt vmcnt({OE_B})\ns_barrier')
        if not OE2: X=OBX[OE_B:]
    if br: e('s_barrier'); stamp('part',4)
    for r in range(3):
        for h in range(2): e(f'ds_read_b128 {vr(192+8*r+4*h,4)}, v14 offset:{2048*r+1024*h}')
    for x in X: e(x)
    if br==0: stamp('oBld')
    for r in range(3):
        e(f's_waitcnt lgkmcnt({4-2*r})')
        for i in range(0,8,2): e(f'v_pk_add_f32 {vr(24+i,2)}, {vr(24+i,2)}, {vr(192+8*r+i,2)}')
    p=224+4*br
    for i in range(4): e(f'v_cvt_pk_bf16_f32 v{p+i}, v{24+2*i}, v{24+2*i+1}')
    nop(2); e(f'v_permlane32_swap_b32 v{p}, v{p+2}\nv_permlane32_swap_b32 v{p+1}, v{p+3}')
    if br==0: stamp('oA')
    e(f'''s_lshl_b32 {T}, {(RBA,RBO)[br]}, 17
    s_add_u32 {T}, {T}, {br*1024}
    buffer_store_dwordx4 {vr(p,4)}, v15, {OUT}, {T} offen{['',' sc1',' sc0 sc1',' nt'][(OSCA,OSC)[br]]}''')
OBX=[]
def oretry():
    for n in range(8):
        f=FR[1][n]
        e(f'L_or{n}:\ns_cmp_eq_u32 {SPIN}, 0\ns_cbranch_scc1 L_og{n}\ns_sub_u32 {SPIN}, {SPIN}, 1')
        if RALL==2:
            e(f's_waitcnt vmcnt(0)\ns_mov_b32 {T2}, 0')
            for m in range(n,8):
                g=FR[1][m]; e(f'v_max3_u32 v1, v{g}, v{g+1}, v{g+2}\nv_max_u32 v1, v1, v{g+3}\nv_cmp_eq_u32 vcc, -1, v1\ns_cbranch_vccz L_os{n}_{m}')
                e(OBX[m]); e(f's_mov_b32 {T2}, 1\nL_os{n}_{m}:')
            e(f's_cmp_eq_u32 {T2}, 0\ns_cbranch_scc1 L_og{n}\ns_branch L_or{n}')
        elif RALL or n==7:
            for x in OBX[n:]: e(x)
            e(f's_waitcnt vmcnt(0)\ns_branch L_oc{n}')
        else:
            e(OBX[n]); e(f's_waitcnt vmcnt(0)\nv_max3_u32 v1, v{f}, v{f+1}, v{f+2}\nv_max_u32 v1, v1, v{f+3}\nv_cmp_eq_u32 vcc, -1, v1\ns_cbranch_vccnz L_or{n}')
            for x in OBX[n+1:]: e(x)
            e(f's_waitcnt vmcnt(0)\ns_branch L_og{n}')
def aretry():
    for n in range(8):
        e(f'L_ar{n}:\ns_cmp_eq_u32 {SPIN}, 0\ns_cbranch_scc1 L_ag{n}\ns_sub_u32 {SPIN}, {SPIN}, 1\ns_waitcnt vmcnt(0)\ns_mov_b32 {T2}, 0')
        for m in range(n,8):
            g=FR[0][m]; e(f'v_max3_u32 v1, v{g}, v{g+1}, v{g+2}\nv_max_u32 v1, v1, v{g+3}\nv_cmp_eq_u32 vcc, -1, v1\ns_cbranch_vccz L_as{n}_{m}')
            e(OAX[m]); e(f's_mov_b32 {T2}, 1\nL_as{n}_{m}:')
        e(f's_cmp_eq_u32 {T2}, 0\ns_cbranch_scc1 L_ag{n}\ns_branch L_ar{n}')
def tailaddr():
    e(f'''v_bfe_u32 v1, v0, 2, 2
    v_lshrrev_b32 v2, 5, v0
    v_lshl_add_u32 v3, v2, 2, v1
    v_lshlrev_b32 v3, 7, v3
    v_lshrrev_b32 v1, 1, v1
    v_lshl_add_u32 v3, v1, 6, v3
    v_and_b32 v1, 1, v23
    v_lshl_add_u32 v3, v1, 5, v3
    v_and_b32 v1, 3, v0
    v_lshl_add_u32 v3, v1, 3, v3
    s_lshr_b32 {T}, {SW}, 1
    s_mul_i32 {T2}, {T}, {16384+32}
    v_xor_b32 v7, {T2}, v3
    v_xor_b32 v8, 64, v7
    v_add_u32 v9, 69632, v7
    v_add_u32 v10, 69632, v8
    s_lshl_b32 {T}, {T}, 5
    s_lshl_b32 {T2}, {HG}, 7
    s_add_u32 {T}, {T}, {T2}
    s_and_b32 {T2}, {SW}, 1
    s_lshl_b32 {T2}, {T2}, 16
    s_add_u32 {T}, {T}, {T2}
    v_and_b32 v1, 31, v0
    v_lshlrev_b32 v1, 11, v1
    v_lshl_add_u32 v1, v2, 4, v1
    v_add_u32 v15, {T}, v1
    s_mul_i32 {T}, {SW}, 6144
    v_add_u32 v14, {T}, v4''')
    for r in range(1,4): e(f's_xor_b32 {T}, {SW}, {2*r}\ns_mul_i32 {T}, {T}, 6144\ns_add_u32 {T}, {T}, {2048*(r-1)}\nv_add_u32 v{10+r}, {T}, v4')
def tail():
    stamp('oAld'); oproj(0); oproj(1)
def build():
    e(f'; @launch grid=(256,1,1) block=(512,1,1) lds=163840')
    L[0]=L[0].strip()
    e(f'.amdgcn_target "amdgcn-amd-amdhsa--gfx950"\n.text\n.globl {NAME}_kernel\n.p2align 8\n.type {NAME}_kernel,@function\n{NAME}_kernel:')
    prologue(); projections(); bepi(); attnA(); attnB(); tail()
    if gen1.PROF:
        e('s_waitcnt vmcnt(0)'); stamp('end')
        e(f's_lshl_b32 {T}, s2, 3\ns_add_u32 {T}, {T}, {SW}\ns_lshl_b32 {T}, {T}, 8\ns_add_u32 {T}, {T}, {PRF}\nv_lshlrev_b32 v1, 2, v0\nbuffer_store_dword v255, v1, {WS}, {T} offen')
    e('L_end:\ns_endpgm')
    side(); bexits(); fbA(); fbB()
    if DP: oretry()
    if DPA: aretry()
    e(f'''.section .rodata,"a"
    .p2align 6
    .amdhsa_kernel {NAME}_kernel
    .amdhsa_next_free_vgpr 256
    .amdhsa_next_free_sgpr 102
    .amdhsa_accum_offset 256
    .amdhsa_group_segment_fixed_size 0
    .amdhsa_kernarg_size 88
    .amdhsa_user_sgpr_count 2
    .amdhsa_user_sgpr_kernarg_segment_ptr 1
    .amdhsa_system_sgpr_workgroup_id_x 1
    .end_amdhsa_kernel''')
    return '\n'.join(L)+'\n'
if __name__=='__main__':
    for a in sys.argv[2:]:
        k,v=a.split('='); setattr(gen1,k,int(v)); globals()[k]=int(v)
    open(sys.argv[1],'w').write(build())
```
